```python
import torch

def _softmax(x, axis=-1):
    return torch.softmax(x, dim=axis)

def _gelu(x):
    return torch.nn.functional.gelu(x, approximate='tanh')

def _silu(x):
    return torch.nn.functional.silu(x)

def _sigmoid(x):
    return torch.sigmoid(x)

def _layernorm(x, axis=-1, eps=1e-05):
    m = x.mean(dim=axis, keepdim=True)
    v = x.var(dim=axis, keepdim=True, unbiased=False)
    return (x - m) / torch.sqrt(v + eps)

def _scatter_add(tgt, idx, src, axis=0):
    return tgt.clone().index_add_(axis, idx, src)

def _segment_sum(src, seg, n):
    out = torch.zeros((n,) + src.shape[1:], dtype=src.dtype)
    return out.index_add_(0, seg, src)

def _pad(x, pw):
    flat = tuple((v for pair in reversed(pw) for v in pair))
    return torch.nn.functional.pad(x, flat)
kernel_name = 'adaLN_cond__ssm_conv_s4__dense_activation_relu__prompt'

def setup_inputs():

    _w = lambda a: (lambda t: t.to(torch.bfloat16) if t.is_floating_point() else t)(torch.as_tensor(a))

    def _A_setup():
        B, L, D, N = (1, 2048, 640, 128)
        A_re = -(lambda _x: torch.exp(torch.as_tensor(_x)))((lambda *s: torch.randn(*s, dtype=torch.bfloat16) * 3.2)(D, N))
        A_im = torch.pi * (lambda *s: torch.randn(*s, dtype=torch.bfloat16) * 0.1)(D, N)
        B_re = (lambda *s: torch.randn(*s, dtype=torch.bfloat16) * 0.2)(D, N)
        B_im = (lambda *s: torch.randn(*s, dtype=torch.bfloat16) * 0.2)(D, N)
        C_re = (lambda *s: torch.randn(*s, dtype=torch.bfloat16) * 0.2)(D, N)
        C_im = (lambda *s: torch.randn(*s, dtype=torch.bfloat16) * 0.2)(D, N)
        log_dt = (lambda *s: torch.randn(*s, dtype=torch.bfloat16) * 0.1)(D) * 0.5 - 4.0
        Dskip = (lambda *s: torch.randn(*s, dtype=torch.bfloat16) * 0.2)(D)
        return {'u': _w((lambda *s: torch.randn(*s, dtype=torch.bfloat16) * 0.05)(B, L, D)), 'A_re': _w(A_re), 'A_im': _w(A_im), 'B_re': _w(B_re), 'B_im': _w(B_im), 'C_re': _w(C_re), 'C_im': _w(C_im), 'log_dt': _w(log_dt), 'Dskip': _w(Dskip)}
    _A_in = _A_setup()

    def _B_setup():
        B, S, D, Dff = (1, 2048, 640, 1728)
        return {'x': _w((lambda *s: torch.randn(*s, dtype=torch.bfloat16) * 0.05)(B, S, D)), 'w1': _w((lambda *s: torch.randn(*s, dtype=torch.bfloat16) * 0.05)(D, Dff)), 'w2': _w((lambda *s: torch.randn(*s, dtype=torch.bfloat16) * 0.05)(Dff, D))}
    _B_in = _B_setup()
    return {'A_u': _A_in['u'], 'A_A_re': _A_in['A_re'], 'A_A_im': _A_in['A_im'], 'A_B_re': _A_in['B_re'], 'A_B_im': _A_in['B_im'], 'A_C_re': _A_in['C_re'], 'A_C_im': _A_in['C_im'], 'A_log_dt': _A_in['log_dt'], 'A_Dskip': _A_in['Dskip'], 'B_x': _B_in['x'], 'B_w1': _B_in['w1'], 'B_w2': _B_in['w2'], 'c': _w((lambda *s: torch.randn(*s, dtype=torch.bfloat16) * 0.1)(1, 640) * 8.0), 'w_mod': _w((lambda *s: torch.randn(*s, dtype=torch.bfloat16) * 0.1)(640, 6 * 640) * 640 ** (-0.5) * 8.0)}

def reference(A_u, A_A_re, A_A_im, A_B_re, A_B_im, A_C_re, A_C_im, A_log_dt, A_Dskip, B_x, B_w1, B_w2, c, w_mod):

    def _A_ref(u, A_re, A_im, B_re, B_im, C_re, C_im, log_dt, Dskip):
        Bsz, L, D = u.shape
        dt = torch.exp(log_dt)[:, None]
        A = A_re + 1j * A_im
        Bc = B_re + 1j * B_im
        Cc = C_re + 1j * C_im
        logdA = dt * A
        dB = dt * Bc
        l = (lambda x, dt: x.to(dt))(torch.arange(L), A_re.dtype)
        P = torch.exp(logdA[:, :, None] * l[None, None, :])
        K = torch.einsum('dn,dnl,dn->dl', Cc, P, dB).real
        L2 = 2 * L
        Kp = _pad(K, ((0, 0), (0, L)))
        up = (lambda x, *d: x.permute(*d))(u, 0, 2, 1)
        up = _pad(up, ((0, 0), (0, 0), (0, L)))
        Kf = (lambda x, axes=(-2, -1): torch.fft.rfft2(x.float(), dim=axes))(Kp[:, None, :], axes=(-2, -1))
        Uf = (lambda x, axes=(-2, -1): torch.fft.rfft2(x.float(), dim=axes))(up[:, :, None, :], axes=(-2, -1))
        Yf = Uf * Kf[None, :, :, :]
        y = (lambda x, s, axes=(-2, -1): torch.fft.irfft2(x, s=s, dim=axes).to(torch.bfloat16))(Yf, (1, L2), axes=(-2, -1))[:, :, 0, :L]
        y = (lambda x, *d: x.permute(*d))(y, 0, 2, 1) + u * Dskip[None, None, :]
        return y

    def _B_ref(x, w1, w2):
        h = torch.einsum('bsd,df->bsf', x, w1)
        zero = torch.zeros_like(h)
        h = torch.maximum(h, zero)
        return torch.einsum('bsf,fd->bsd', h, w2)
    x = A_u
    mod = (_silu(c) @ w_mod).reshape(c.shape[0], 6, 1, -1)
    sa, ca, ga, sb, cb, gb = (mod[:, 0].clone(), mod[:, 1].clone(), mod[:, 2].clone(), mod[:, 3].clone(), mod[:, 4].clone(), mod[:, 5].clone())
    h = _layernorm(x, axis=-1) * (1 + ca) + sa
    x = x + ga * _A_ref(h, A_A_re, A_A_im, A_B_re, A_B_im, A_C_re, A_C_im, A_log_dt, A_Dskip)
    h = _layernorm(x, axis=-1) * (1 + cb) + sb
    x = x + gb * _B_ref(h, B_w1, B_w2)
    return x
```

```python
import sys

NAME = "adaLN_cond__ssm_conv_s4__dense_activation_relu__prompt"

WS_MOD = 0
WS_XT  = 0x10000
SZ_T   = 640 * 2048 * 2
WS_XNT = WS_XT + SZ_T
WS_KR  = WS_XNT + SZ_T
SZ_KR  = 640 * 2 * 2048 * 2
WS_X1T = WS_KR + SZ_KR
WS_H2T = WS_X1T + SZ_T
WS_H1T = WS_H2T + SZ_T
SZ_H1T = 1728 * 2048 * 2

KA = dict(u=0, Are=8, Aim=16, Bre=24, Bim=32, Cre=40, Cim=48, logdt=56, Dskip=64,
          Bx=72, w1=80, w2=88, c=96, wmod=104, out=112, dbg=120, ws=128)

class Asm:
    def __init__(self):
        self.lines = []
    def __call__(self, s=""):
        for ln in s.split("\n"):
            self.lines.append("    " + ln.strip() if ln.strip() and not ln.strip().endswith(":") else ln.strip())
    def label(self, s):
        self.lines.append(s + ":")
    def raw(self, s):
        self.lines.append(s)
    def text(self):
        return "\n".join(self.lines) + "\n"

def srd(a, sd, sbase, nbytes, off=0):
    if off:
        a(f"s_add_u32 s{sd}, s{sbase}, {off}")
        a(f"s_addc_u32 s{sd+1}, s{sbase+1}, 0")
    else:
        a(f"s_mov_b32 s{sd}, s{sbase}")
        a(f"s_mov_b32 s{sd+1}, s{sbase+1}")
    a(f"s_mov_b32 s{sd+2}, {nbytes}")
    a(f"s_mov_b32 s{sd+3}, 0x00020000")

def kdesc(a, name, vgpr, sgpr):
    acc = (vgpr + 3) // 4 * 4
    a.raw(f""".section .rodata,"a"
.p2align 6
.amdhsa_kernel {name}
  .amdhsa_next_free_vgpr {vgpr}
  .amdhsa_next_free_sgpr {sgpr}
  .amdhsa_accum_offset {acc}
  .amdhsa_group_segment_fixed_size 0
  .amdhsa_kernarg_size 136
  .amdhsa_user_sgpr_count 2
  .amdhsa_user_sgpr_kernarg_segment_ptr 1
  .amdhsa_system_sgpr_workgroup_id_x 1
.end_amdhsa_kernel
.text""")

def kstart(a, name):
    a.raw(f".globl {name}\n.p2align 8\n.type {name},@function\n{name}:")

LOG2E = 0x3fb8aa3b
INV2PI = 0x3e22f983

N_KGEN, N_LN1, N_MOD = 640, 64, 120
def gen_prep(a):
    nm = "prep_kernel"
    kstart(a, nm)
    a(f"s_cmp_ge_u32 s2, {N_KGEN+N_LN1+N_MOD}")
    a("s_cbranch_scc1 prep_done")
    a(f"s_cmp_ge_u32 s2, {N_KGEN+N_LN1}")
    a("s_cbranch_scc1 prep_mod")
    a(f"s_cmp_ge_u32 s2, {N_KGEN}")
    a("s_cbranch_scc1 prep_ln1")
    a("s_load_dwordx16 s[4:19], s[0:1], 8")
    a(f"s_load_dwordx2 s[20:21], s[0:1], {KA['ws']}")
    a("v_and_b32 v1, 63, v0")
    a("v_lshrrev_b32 v2, 6, v0")
    a("v_and_b32 v3, 15, v1")
    a("v_lshrrev_b32 v4, 4, v1")
    a("s_lshl_b32 s3, s2, 8")
    a("v_lshlrev_b32 v5, 6, v2")
    a("v_lshlrev_b32 v6, 4, v4")
    a("v_add3_u32 v5, v5, v6, s3")
    a("s_waitcnt lgkmcnt(0)")
    for i in range(6):
        srd(a, 24 + 4*i, 4 + 2*i, 640*128*2)
    srd(a, 48, 16, 640*2)
    for i in range(6):
        a(f"buffer_load_dwordx4 v[{8+4*i}:{11+4*i}], v5, s[{24+4*i}:{27+4*i}], 0 offen")
    a("s_lshl_b32 s3, s2, 1")
    a("v_mov_b32 v6, s3")
    a("buffer_load_ushort v7, v6, s[48:51], 0 offen")
    a("s_lshl_b32 s52, s2, 13")
    a(f"s_add_u32 s52, s52, {WS_KR}")
    a("s_add_u32 s52, s20, s52")
    a("s_addc_u32 s53, s21, 0")
    a("s_mov_b32 s54, 8192")
    a("s_mov_b32 s55, 0x00020000")
    a(f"s_mov_b32 s56, {LOG2E}")
    a(f"s_mov_b32 s57, {INV2PI}")
    a("s_mov_b32 s58, 0xffff0000")
    a("v_cvt_f32_u32 v32, v3")
    a("v_lshlrev_b32 v33, 4, v3")
    a("v_cvt_f32_u32 v33, v33")
    for r in range(40, 57):
        a(f"v_mov_b32 v{r}, 0")
    a("s_waitcnt vmcnt(0)")
    a("v_lshlrev_b32 v7, 16, v7")
    a("v_mul_f32 v7, s56, v7")
    a("v_exp_f32 v7, v7")
    a("s_nop 0")
    a("v_cvt_pk_bf16_f32 v7, v7, v7")
    a("v_lshlrev_b32 v7, 16, v7")
    ARE, AIM, BRE, BIM, CRE, CIM = 57, 58, 59, 60, 61, 62
    WR, WI, AR, PH = 63, 64, 65, 66
    T0, T1, T2, T3, T4, T5 = 67, 68, 69, 70, 71, 72
    EHR, EHI, ELR, ELI = 73, 74, 75, 76
    def ext(dst, base, s):
        r = base + s // 2
        if s % 2 == 0:
            a(f"v_lshlrev_b32 v{dst}, 16, v{r}")
        else:
            a(f"v_and_b32 v{dst}, s58, v{r}")
    for s in range(8):
        ext(ARE, 8, s); ext(AIM, 12, s); ext(BRE, 16, s); ext(BIM, 20, s); ext(CRE, 24, s); ext(CIM, 28, s)
        a(f"v_mul_f32 v{ARE}, v7, v{ARE}")
        a(f"v_mul_f32 v{AIM}, v7, v{AIM}")
        a(f"v_mul_f32 v{BRE}, v7, v{BRE}")
        a(f"v_mul_f32 v{BIM}, v7, v{BIM}")
        a(f"v_mul_f32 v{T0}, v{CIM}, v{BIM}")
        a(f"v_fma_f32 v{WR}, v{CRE}, v{BRE}, -v{T0}")
        a(f"v_mul_f32 v{T0}, v{CIM}, v{BRE}")
        a(f"v_fma_f32 v{WI}, v{CRE}, v{BIM}, v{T0}")
        a(f"v_mul_f32 v{AR}, s56, v{ARE}")
        a(f"v_mul_f32 v{PH}, s57, v{AIM}")
        a(f"v_mul_f32 v{T0}, v{AR}, v33")
        a(f"v_mul_f32 v{T1}, v{PH}, v33")
        a(f"v_mul_f32 v{T2}, v{AR}, v32")
        a(f"v_mul_f32 v{T3}, v{PH}, v32")
        a(f"v_fract_f32 v{T1}, v{T1}")
        a(f"v_fract_f32 v{T3}, v{T3}")
        a(f"v_exp_f32 v{T0}, v{T0}")
        a(f"v_exp_f32 v{T2}, v{T2}")
        a(f"v_sin_f32 v{T4}, v{T1}")
        a(f"v_cos_f32 v{T1}, v{T1}")
        a(f"v_sin_f32 v{T5}, v{T3}")
        a(f"v_cos_f32 v{T3}, v{T3}")
        a("s_nop 0")
        a(f"v_mul_f32 v{EHR}, v{T0}, v{T1}")
        a(f"v_mul_f32 v{EHI}, v{T0}, v{T4}")
        a(f"v_mul_f32 v{ELR}, v{T2}, v{T3}")
        a(f"v_mul_f32 v{ELI}, v{T2}, v{T5}")
        for seg in range(4):
            AR_, AI_ = 77 + 2*(seg & 1), 78 + 2*(seg & 1)
            BR_, BI_ = 81 + 2*(seg & 1), 82 + 2*(seg & 1)
            a(f"v_mul_f32 v{T0}, v{WI}, v{EHI}")
            a(f"v_fma_f32 v{AR_}, v{WR}, v{EHR}, -v{T0}")
            a(f"v_mul_f32 v{T0}, v{WI}, v{EHR}")
            a(f"v_fma_f32 v{AI_}, -v{WR}, v{EHI}, -v{T0}")
            a(f"v_mov_b32 v{BR_}, v{ELR}")
            a(f"v_mov_b32 v{BI_}, v{ELI}")
            a(f"v_mul_f32 v{T0}, v{EHI}, v{EHI}")
            a(f"v_add_f32 v{T1}, v{EHR}, v{EHR}")
            a(f"v_fma_f32 v{EHR}, v{EHR}, v{EHR}, -v{T0}")
            a(f"v_mul_f32 v{EHI}, v{T1}, v{EHI}")
            acc = 40 + 4*seg
            a(f"v_mfma_f32_16x16x4_f32 v[{acc}:{acc+3}], v{AR_}, v{BR_}, v[{acc}:{acc+3}]")
            a(f"v_mfma_f32_16x16x4_f32 v[{acc}:{acc+3}], v{AI_}, v{BI_}, v[{acc}:{acc+3}]")
            if seg < 3:
                a(f"v_mul_f32 v{T0}, v{ELI}, v{ELI}")
                a(f"v_add_f32 v{T1}, v{ELR}, v{ELR}")
                a(f"v_fma_f32 v{ELR}, v{ELR}, v{ELR}, -v{T0}")
                a(f"v_mul_f32 v{ELI}, v{T1}, v{ELI}")
        a(f"v_fma_f32 v56, v{WR}, v{EHR}, v56")
        a(f"v_fma_f32 v56, -v{WI}, v{EHI}, v56")
    a("s_nop 15")
    a("v_lshlrev_b32 v57, 12, v2")
    a("v_lshlrev_b32 v58, 8, v4")
    a("v_lshlrev_b32 v59, 2, v3")
    a("v_add3_u32 v57, v57, v58, v59")
    for seg in range(4):
        for r in range(4):
            a(f"ds_write_b32 v57, v{40+4*seg+r} offset:{seg*1024 + r*64}")
    a("v_lshlrev_b32 v58, 2, v0")
    a("ds_write_b32 v58, v56 offset:16384")
    a("s_waitcnt lgkmcnt(0)")
    a("s_barrier")
    TB = 17408
    for seg in range(4):
        for w in range(4):
            a(f"ds_read_b32 v{60+4*seg+w}, v58 offset:{w*4096 + seg*1024}")
    a("v_mov_b32 v59, 0")
    for i in range(16):
        a(f"ds_read_b32 v{76+i}, v59 offset:{16384 + (i*16+8)*4}")
    a("s_waitcnt lgkmcnt(0)")
    for seg in range(4):
        b = 60 + 4*seg
        a(f"v_add_f32 v{b}, v{b}, v{b+1}")
        a(f"v_add_f32 v{b+2}, v{b+2}, v{b+3}")
        a(f"v_add_f32 v{b}, v{b}, v{b+2}")
        a(f"ds_write_b32 v58, v{b} offset:{TB + seg*1024}")
    for i in range(1, 16):
        a(f"v_add_f32 v76, v76, v{76+i}")
    a(f"ds_write_b32 v59, v76 offset:{TB + (1024+128)*4}")
    a("s_waitcnt lgkmcnt(0)")
    a("s_barrier")
    a("v_lshlrev_b32 v57, 3, v0")
    a("v_sub_u32 v57, 2047, v57")
    a("s_movk_i32 s59, 0x100")
    for e in range(8):
        L, F, B, A1 = 60, 61, 62, 63
        a(f"v_subrev_u32 v{L}, {e}, v57")
        a(f"v_cvt_f32_u32 v{F}, v{L}")
        a(f"v_cvt_pk_bf16_f32 v{B}, v{F}, v{F}")
        a(f"v_bfe_u32 v{A1}, v{B}, 7, 8")
        a(f"v_subrev_u32 v{A1}, 134, v{A1}")
        a(f"v_lshlrev_b32 v{A1}, 8, v{A1}")
        a(f"v_and_b32 v{B}, 127, v{B}")
        a(f"v_add3_u32 v{A1}, v{A1}, v{B}, 64")
        a(f"v_add_u32 v{A1}, 64, v{A1}")
        a(f"v_cmp_gt_u32 vcc, s59, v{L}")
        a("s_nop 1")
        a(f"v_cndmask_b32 v{A1}, v{A1}, v{L}, vcc")
        a(f"v_lshlrev_b32 v{A1}, 2, v{A1}")
        a(f"ds_read_b32 v{64+e}, v{A1} offset:{TB}")
    a("s_waitcnt lgkmcnt(0)")
    for p in range(4):
        k0, k1 = 64 + 2*p, 65 + 2*p
        a(f"v_cvt_pk_bf16_f32 v{72+p}, v{k0}, v{k1}")
        a(f"v_lshlrev_b32 v60, 16, v{72+p}")
        a(f"v_and_b32 v61, s58, v{72+p}")
        a(f"v_sub_f32 v60, v{k0}, v60")
        a(f"v_sub_f32 v61, v{k1}, v61")
        a(f"v_cvt_pk_bf16_f32 v{76+p}, v60, v61")
    a("v_lshlrev_b32 v57, 4, v0")
    a("buffer_store_dwordx4 v[72:75], v57, s[52:55], 0 offen")
    a("v_add_u32 v58, 4096, v57")
    a("buffer_store_dwordx4 v[76:79], v58, s[52:55], 0 offen")
    a("s_endpgm")

    a.label("prep_ln1")
    a(f"s_sub_u32 s2, s2, {N_KGEN}")
    a(f"s_load_dwordx2 s[4:5], s[0:1], {KA['u']}")
    a(f"s_load_dwordx2 s[6:7], s[0:1], {KA['ws']}")
    a("v_lshrrev_b32 v1, 3, v0")
    a("v_and_b32 v2, 7, v0")
    a("s_lshl_b32 s3, s2, 5")
    a("v_add_u32 v3, s3, v1")
    a("s_movk_i32 s20, 1280")
    a("v_mul_lo_u32 v3, v3, s20")
    a("v_lshlrev_b32 v4, 4, v2")
    a("v_add_u32 v3, v3, v4")
    a("s_waitcnt lgkmcnt(0)")
    srd(a, 8, 4, 2048*640*2)
    srd(a, 12, 6, SZ_T, WS_XT)
    srd(a, 16, 6, SZ_T, WS_XNT)
    for j in range(10):
        a(f"buffer_load_dwordx4 v[{8+4*j}:{11+4*j}], v3, s[8:11], 0 offen offset:{128*j}")
    a("s_mov_b32 s21, 0xffff0000")
    a("v_mov_b32 v48, 0")
    a("v_mov_b32 v49, 0")
    a("s_waitcnt vmcnt(0)")
    for r in range(8, 48):
        a(f"v_lshlrev_b32 v50, 16, v{r}")
        a(f"v_and_b32 v51, s21, v{r}")
        a("v_add_f32 v48, v48, v50")
        a("v_add_f32 v49, v49, v51")
    a("v_add_f32 v48, v48, v49")
    def red8(v):
        a("s_nop 1")
        a(f"v_add_f32_dpp v{v}, v{v}, v{v} quad_perm:[1,0,3,2] row_mask:0xf bank_mask:0xf")
        a("s_nop 1")
        a(f"v_add_f32_dpp v{v}, v{v}, v{v} quad_perm:[2,3,0,1] row_mask:0xf bank_mask:0xf")
        a("s_nop 1")
        a(f"v_add_f32_dpp v{v}, v{v}, v{v} row_half_mirror row_mask:0xf bank_mask:0xf")
    red8(48)
    a(f"s_mov_b32 s22, {0x3acccccd}")
    a("v_mul_f32 v48, s22, v48")
    a("v_mov_b32 v49, 0")
    a("v_mov_b32 v52, 0")
    for r in range(8, 48):
        a(f"v_lshlrev_b32 v50, 16, v{r}")
        a(f"v_and_b32 v51, s21, v{r}")
        a("v_sub_f32 v50, v50, v48")
        a("v_sub_f32 v51, v51, v48")
        a("v_fmac_f32 v49, v50, v50")
        a("v_fmac_f32 v52, v51, v51")
    a("v_add_f32 v49, v49, v52")
    red8(49)
    a("v_mul_f32 v49, s22, v49")
    a("v_cvt_pk_bf16_f32 v50, v48, v49")
    a("v_lshlrev_b32 v48, 16, v50")
    a("v_and_b32 v49, s21, v50")
    a(f"v_add_f32 v49, {0x3727c5ac}, v49")
    a("v_cvt_pk_bf16_f32 v49, v49, v49")
    a("v_lshlrev_b32 v49, 16, v49")
    a("v_sqrt_f32 v49, v49")
    a("s_nop 0")
    a("v_cvt_pk_bf16_f32 v49, v49, v49")
    a("v_lshlrev_b32 v49, 16, v49")
    a("v_rcp_f32 v53, v49")
    a("s_movk_i32 s20, 528")
    a("v_mul_lo_u32 v54, v2, s20")
    a("v_lshlrev_b32 v55, 1, v1")
    a("v_add_u32 v54, v54, v55")
    XN_L = 42240
    for j in range(10):
        for p in range(4):
            r = 8 + 4*j + p
            o = j*4224 + 2*p*64
            a(f"ds_write_b16 v54, v{r} offset:{o}")
            a(f"ds_write_b16_d16_hi v54, v{r} offset:{o+64}")
            a(f"v_lshlrev_b32 v50, 16, v{r}")
            a(f"v_and_b32 v51, s21, v{r}")
            a("v_sub_f32 v50, v50, v48")
            a("v_sub_f32 v51, v51, v48")
            a("v_cvt_pk_bf16_f32 v50, v50, v51")
            a("v_and_b32 v51, s21, v50")
            a("v_lshlrev_b32 v50, 16, v50")
            a("v_mul_f32 v56, v50, v53")
            a("v_mul_f32 v57, v51, v53")
            a("v_fma_f32 v50, -v56, v49, v50")
            a("v_fma_f32 v51, -v57, v49, v51")
            a("v_fmac_f32 v56, v50, v53")
            a("v_fmac_f32 v57, v51, v53")
            a("v_cvt_pk_bf16_f32 v56, v56, v57")
            if XN_L + o + 64 < 65536:
                a(f"ds_write_b16 v54, v56 offset:{XN_L+o}")
                a(f"ds_write_b16_d16_hi v54, v56 offset:{XN_L+o+64}")
            else:
                a(f"v_add_u32 v58, {XN_L}, v54")
                a(f"ds_write_b16 v58, v56 offset:{o}")
                a(f"ds_write_b16_d16_hi v58, v56 offset:{o+64}")
    a("s_waitcnt lgkmcnt(0)")
    a("s_barrier")
    a("v_lshrrev_b32 v1, 2, v0")
    a("v_and_b32 v2, 3, v0")
    a("v_lshlrev_b32 v3, 6, v1")
    a("v_lshrrev_b32 v4, 3, v1")
    a("v_lshlrev_b32 v4, 4, v4")
    a("v_lshlrev_b32 v5, 4, v2")
    a("v_add3_u32 v3, v3, v4, v5")
    a(f"v_add_u32 v6, {XN_L}, v3")
    a("v_lshlrev_b32 v4, 12, v1")
    a("v_add_u32 v4, v4, v5")
    a("s_lshl_b32 s3, s2, 6")
    a("v_add_u32 v4, s3, v4")
    for p in range(10):
        a(f"ds_read_b128 v[{8+4*p}:{11+4*p}], v3 offset:{4224*p}")
    a("s_mov_b32 s23, 0")
    for p in range(10):
        a(f"s_waitcnt lgkmcnt({9-p})")
        a(f"buffer_store_dwordx4 v[{8+4*p}:{11+4*p}], v4, s[12:15], s23 offen")
        a(f"s_add_u32 s23, s23, {64*4096}")
    a("s_waitcnt vmcnt(0)")
    for p in range(10):
        a(f"ds_read_b128 v[{8+4*p}:{11+4*p}], v6 offset:{4224*p}")
    a("s_mov_b32 s23, 0")
    for p in range(10):
        a(f"s_waitcnt lgkmcnt({9-p})")
        a(f"buffer_store_dwordx4 v[{8+4*p}:{11+4*p}], v4, s[16:19], s23 offen")
        a(f"s_add_u32 s23, s23, {64*4096}")
    a("s_endpgm")

    a.label("prep_mod")
    a(f"s_sub_u32 s2, s2, {N_KGEN+N_LN1}")
    a(f"s_load_dwordx4 s[4:7], s[0:1], {KA['c']}")
    a(f"s_load_dwordx2 s[16:17], s[0:1], {KA['ws']}")
    a("v_and_b32 v1, 3, v0")
    a("v_lshrrev_b32 v2, 2, v0")
    a("s_movk_i32 s20, 7680")
    a("v_mul_lo_u32 v3, v2, s20")
    a("v_lshlrev_b32 v4, 4, v1")
    a("s_lshl_b32 s3, s2, 6")
    a("v_add3_u32 v3, v3, v4, s3")
    a("v_lshlrev_b32 v4, 1, v2")
    a("s_waitcnt lgkmcnt(0)")
    srd(a, 8, 4, 1280)
    srd(a, 12, 6, 640*3840*2)
    srd(a, 24, 16, 3840*4, WS_MOD)
    a("s_mov_b32 s23, 0")
    for j in range(10):
        a(f"buffer_load_dwordx4 v[{8+4*j}:{11+4*j}], v3, s[12:15], s23 offen")
        a(f"s_add_u32 s23, s23, {64*7680}")
    for j in range(10):
        a(f"buffer_load_ushort v{48+j}, v4, s[8:11], 0 offen offset:{128*j}")
    a(f"s_mov_b32 s21, {LOG2E}")
    a("s_mov_b32 s22, 0xffff0000")
    for e in range(8):
        a(f"v_mov_b32 v{60+e}, 0")
    a("s_waitcnt vmcnt(0)")
    for j in range(10):
        c = 48 + j
        a(f"v_lshlrev_b32 v{c}, 16, v{c}")
        a(f"v_mul_f32 v58, s21, v{c}")
        a("v_sub_f32 v58, 0, v58")
        a("v_exp_f32 v58, v58")
        a("s_nop 0")
        a("v_add_f32 v58, 1.0, v58")
        a("v_rcp_f32 v58, v58")
        a("s_nop 0")
        a(f"v_mul_f32 v58, v{c}, v58")
        a("v_cvt_pk_bf16_f32 v58, v58, v58")
        a("v_lshlrev_b32 v58, 16, v58")
        for p in range(4):
            r = 8 + 4*j + p
            a(f"v_lshlrev_b32 v59, 16, v{r}")
            a(f"v_fmac_f32 v{60+2*p}, v58, v59")
            a(f"v_and_b32 v59, s22, v{r}")
            a(f"v_fmac_f32 v{61+2*p}, v58, v59")
    a("v_lshlrev_b32 v5, 7, v2")
    a("v_lshlrev_b32 v6, 5, v1")
    a("v_add_u32 v5, v5, v6")
    a("ds_write_b128 v5, v[60:63]")
    a("ds_write_b128 v5, v[64:67] offset:16")
    a("s_waitcnt lgkmcnt(0)")
    a("s_barrier")
    a("v_and_b32 v1, 31, v0")
    a("v_lshrrev_b32 v2, 5, v0")
    a("v_lshlrev_b32 v3, 10, v2")
    a("v_lshlrev_b32 v4, 2, v1")
    a("v_add_u32 v3, v3, v4")
    for i in range(8):
        a(f"ds_read_b32 v{8+i}, v3 offset:{128*i}")
    a("s_waitcnt lgkmcnt(0)")
    for i in range(1, 8):
        a(f"v_add_f32 v8, v8, v{8+i}")
    a("v_lshlrev_b32 v5, 2, v0")
    a("ds_write_b32 v5, v8 offset:8192")
    a("s_waitcnt lgkmcnt(0)")
    a("s_barrier")
    for i in range(8):
        a(f"ds_read_b32 v{8+i}, v4 offset:{8192+128*i}")
    a("s_waitcnt lgkmcnt(0)")
    for i in range(1, 8):
        a(f"v_add_f32 v8, v8, v{8+i}")
    a("v_cvt_pk_bf16_f32 v8, v8, v8")
    a("v_lshlrev_b32 v8, 16, v8")
    a("s_lshl_b32 s3, s2, 7")
    a("v_add_u32 v4, s3, v4")
    a("v_cmp_gt_u32 vcc, 32, v0")
    a("s_and_saveexec_b64 s[28:29], vcc")
    a("s_cbranch_execz prep_done")
    a("buffer_store_dword v8, v4, s[24:27], 0 offen")
    a.label("prep_done")
    a("s_endpgm")
    kdesc(a, nm, 96, 64)


def gen_conv(a):
    nm = "conv_kernel"
    kstart(a, nm)
    a("s_cmp_ge_u32 s2, 640")
    a("s_cbranch_scc1 conv_done")
    HB, KH, KL, PART = 0, 4224, 8832, 13440
    a(f"s_load_dwordx2 s[4:5], s[0:1], {KA['ws']}")
    a(f"s_load_dwordx2 s[6:7], s[0:1], {KA['Dskip']}")
    a("v_and_b32 v1, 63, v0")
    a("v_lshrrev_b32 v2, 6, v0")
    a("v_and_b32 v3, 15, v1")
    a("v_lshrrev_b32 v4, 4, v1")
    a("v_lshlrev_b32 v5, 4, v0")
    a("s_waitcnt lgkmcnt(0)")
    a("s_lshl_b32 s3, s2, 12")
    for sd, off in ((8, WS_XNT), (12, WS_XT), (16, WS_X1T)):
        a(f"s_add_u32 s{sd}, s3, {off}")
        a(f"s_add_u32 s{sd}, s4, s{sd}")
        a(f"s_addc_u32 s{sd+1}, s5, 0")
        a(f"s_mov_b32 s{sd+2}, 4096")
        a(f"s_mov_b32 s{sd+3}, 0x00020000")
    a("s_lshl_b32 s20, s2, 13")
    a(f"s_add_u32 s20, s20, {WS_KR}")
    a("s_add_u32 s20, s4, s20")
    a("s_addc_u32 s21, s5, 0")
    a("s_mov_b32 s22, 8192")
    a("s_mov_b32 s23, 0x00020000")
    srd(a, 24, 4, 3840*4, WS_MOD)
    srd(a, 28, 6, 1280)
    a("buffer_load_dwordx4 v[8:11], v5, s[8:11], 0 offen")
    a("buffer_load_dwordx4 v[16:19], v5, s[20:23], 0 offen")
    a("v_add_u32 v6, 4096, v5")
    a("buffer_load_dwordx4 v[20:23], v6, s[20:23], 0 offen")
    a("s_lshl_b32 s3, s2, 2")
    a("v_mov_b32 v6, s3")
    a("buffer_load_dword v24, v6, s[24:27], 0 offen")
    a(f"buffer_load_dword v25, v6, s[24:27], 0 offen offset:{640*4}")
    a("v_add_u32 v7, 5120, v6")
    a("buffer_load_dword v26, v7, s[24:27], 0 offen")
    a("s_lshl_b32 s3, s2, 1")
    a("v_mov_b32 v6, s3")
    a("buffer_load_ushort v27, v6, s[28:31], 0 offen")
    a("buffer_load_dwordx4 v[12:15], v5, s[12:15], 0 offen")
    for r in range(28, 32):
        a(f"v_mov_b32 v{r}, 0")
    a("v_cmp_gt_u32 vcc, 32, v0")
    a("s_and_saveexec_b64 s[32:33], vcc")
    a(f"ds_write_b128 v5, v[28:31] offset:{KH+4096}")
    a(f"ds_write_b128 v5, v[28:31] offset:{KL+4096}")
    a("s_mov_b64 exec, s[32:33]")
    a("v_cmp_gt_u32 vcc, 2, v0")
    a("s_and_saveexec_b64 s[32:33], vcc")
    a(f"ds_write_b128 v5, v[28:31] offset:{HB}")
    a("s_mov_b64 exec, s[32:33]")
    a("s_mov_b32 s34, 0xffff0000")
    a("s_waitcnt vmcnt(5)")
    a(f"ds_write_b128 v5, v[16:19] offset:{KH}")
    a(f"ds_write_b128 v5, v[20:23] offset:{KL}")
    a("s_waitcnt vmcnt(1)")
    a("v_add_f32 v25, 1.0, v25")
    a("v_cvt_pk_bf16_f32 v25, v25, v25")
    a("v_lshlrev_b32 v25, 16, v25")
    a("v_lshlrev_b32 v27, 16, v27")
    for p in range(4):
        r = 8 + p
        a(f"v_lshlrev_b32 v28, 16, v{r}")
        a(f"v_and_b32 v29, s34, v{r}")
        a("v_mul_f32 v28, v28, v25")
        a("v_mul_f32 v29, v29, v25")
        a("v_cvt_pk_bf16_f32 v28, v28, v29")
        a("v_and_b32 v29, s34, v28")
        a("v_lshlrev_b32 v28, 16, v28")
        a("v_add_f32 v28, v28, v24")
        a("v_add_f32 v29, v29, v24")
        a(f"v_cvt_pk_bf16_f32 v{r}, v28, v29")
    a(f"ds_write_b128 v5, v[8:11] offset:{HB+32}")
    a("v_mov_b32 v6, v26")
    a("v_mov_b32 v7, v27")
    a("v_lshlrev_b32 v28, 6, v2")
    a("v_lshlrev_b32 v29, 1, v3")
    a("v_add3_u32 v28, v28, v29, 50")
    a("v_lshlrev_b32 v29, 4, v4")
    a("v_sub_u32 v28, v28, v29")
    a("v_lshlrev_b32 v30, 6, v2")
    a(f"v_add_u32 v30, {KH+528}, v30")
    a("v_lshlrev_b32 v31, 5, v3")
    a("v_sub_u32 v30, v30, v31")
    a("v_sub_u32 v30, v30, v29")
    for r in range(32, 64):
        a(f"v_mov_b32 v{r}, 0")
    a("s_waitcnt lgkmcnt(0)")
    a("s_barrier")
    for aa in range(16):
        a(f"ds_read_b128 v[{64+4*aa}:{67+4*aa}], v28 offset:{256*aa}")
    BUF = [(16, 20), (128, 132)]
    rhos = list(range(-1, 15))
    def ldB(i):
        rho = rhos[i]
        h, l = BUF[i & 1]
        a(f"ds_read_b128 v[{h}:{h+3}], v30 offset:{256*(14-rho)}")
        a(f"ds_read_b128 v[{l}:{l+3}], v30 offset:{256*(14-rho)+4608}")
    ldB(0)
    for i, rho in enumerate(rhos):
        if i + 1 < len(rhos):
            ldB(i + 1)
            a("s_waitcnt lgkmcnt(2)")
        else:
            a("s_waitcnt lgkmcnt(0)")
        h, l = BUF[i & 1]
        cmin = max(0, (rho + 1) // 2)
        for c in range(cmin, 8):
            aa = 2*c - rho
            assert 0 <= aa <= 15
            A = 64 + 4*aa
            acc = 32 + 4*c
            a(f"v_mfma_f32_16x16x32_bf16 v[{acc}:{acc+3}], v[{A}:{A+3}], v[{h}:{h+3}], v[{acc}:{acc+3}]")
        for c in range(cmin, 8):
            aa = 2*c - rho
            A = 64 + 4*aa
            acc = 32 + 4*c
            a(f"v_mfma_f32_16x16x32_bf16 v[{acc}:{acc+3}], v[{A}:{A+3}], v[{l}:{l+3}], v[{acc}:{acc+3}]")
    a("s_nop 15")
    a("v_lshlrev_b32 v28, 13, v2")
    a("v_lshlrev_b32 v29, 6, v3")
    a("v_lshlrev_b32 v30, 4, v4")
    a("v_add3_u32 v28, v28, v29, v30")
    for c in range(8):
        a(f"ds_write_b128 v28, v[{32+4*c}:{35+4*c}] offset:{PART+1024*c}")
    a("s_waitcnt lgkmcnt(0)")
    a("s_barrier")
    a("v_lshlrev_b32 v28, 5, v0")
    for w in range(4):
        a(f"ds_read_b128 v[{32+8*w}:{35+8*w}], v28 offset:{PART+8192*w}")
        a(f"ds_read_b128 v[{36+8*w}:{39+8*w}], v28 offset:{PART+8192*w+16}")
    a("s_waitcnt lgkmcnt(0)")
    for e in range(8):
        a(f"v_add_f32 v{32+e}, v{32+e}, v{40+e}")
        a(f"v_add_f32 v{48+e}, v{48+e}, v{56+e}")
        a(f"v_add_f32 v{32+e}, v{32+e}, v{48+e}")
    a("s_waitcnt vmcnt(0)")
    for p in range(4):
        y0, y1 = 32 + 2*p, 33 + 2*p
        a(f"v_cvt_pk_bf16_f32 v40, v{y0}, v{y1}")
        a("v_lshlrev_b32 v41, 16, v40")
        a("v_and_b32 v42, s34, v40")
        a(f"v_lshlrev_b32 v43, 16, v{8+p}")
        a(f"v_and_b32 v44, s34, v{8+p}")
        a("v_mul_f32 v43, v43, v7")
        a("v_mul_f32 v44, v44, v7")
        a("v_cvt_pk_bf16_f32 v43, v43, v44")
        a("v_and_b32 v44, s34, v43")
        a("v_lshlrev_b32 v43, 16, v43")
        a("v_add_f32 v41, v41, v43")
        a("v_add_f32 v42, v42, v44")
        a("v_cvt_pk_bf16_f32 v41, v41, v42")
        a("v_and_b32 v42, s34, v41")
        a("v_lshlrev_b32 v41, 16, v41")
        a("v_mul_f32 v41, v41, v6")
        a("v_mul_f32 v42, v42, v6")
        a("v_cvt_pk_bf16_f32 v41, v41, v42")
        a("v_and_b32 v42, s34, v41")
        a("v_lshlrev_b32 v41, 16, v41")
        a(f"v_lshlrev_b32 v43, 16, v{12+p}")
        a(f"v_and_b32 v44, s34, v{12+p}")
        a("v_add_f32 v41, v41, v43")
        a("v_add_f32 v42, v42, v44")
        a(f"v_cvt_pk_bf16_f32 v{48+p}, v41, v42")
    a("buffer_store_dwordx4 v[48:51], v5, s[16:19], 0 offen")
    a.label("conv_done")
    a("s_endpgm")
    kdesc(a, nm, 136, 48)

def allreduce64(a, regs, tmp):
    for ctl in ("quad_perm:[1,0,3,2]", "quad_perm:[2,3,0,1]", "row_half_mirror", "row_mirror"):
        a("s_nop 1")
        for v in regs:
            a(f"v_add_f32_dpp v{v}, v{v}, v{v} {ctl} row_mask:0xf bank_mask:0xf")
    for swap in ("v_permlane16_swap_b32", "v_permlane32_swap_b32"):
        for v, t in zip(regs, tmp):
            a(f"v_mov_b32 v{t}, v{v}")
        a("s_nop 1")
        for v, t in zip(regs, tmp):
            a(f"{swap} v{v}, v{t}")
        a("s_nop 1")
        for v, t in zip(regs, tmp):
            a(f"v_add_f32 v{v}, v{v}, v{t}")

def gen_ln2(a):
    nm = "ln2_kernel"
    kstart(a, nm)
    a("s_cmp_ge_u32 s2, 128")
    a("s_cbranch_scc1 ln2_done")
    a(f"s_load_dwordx2 s[4:5], s[0:1], {KA['ws']}")
    a("s_and_b32 s3, s2, 7")
    a("s_lshl_b32 s3, s3, 4")
    a("s_lshr_b32 s6, s2, 3")
    a("s_add_u32 s3, s3, s6")
    a("s_lshl_b32 s3, s3, 5")
    a("v_and_b32 v1, 63, v0")
    a("v_lshrrev_b32 v2, 6, v0")
    a("v_lshlrev_b32 v3, 12, v1")
    a("v_lshlrev_b32 v4, 3, v2")
    a("v_add3_u32 v3, v3, v4, s3")
    a("v_lshlrev_b32 v5, 2, v1")
    a("s_waitcnt lgkmcnt(0)")
    srd(a, 8, 4, SZ_T, WS_X1T)
    srd(a, 12, 4, SZ_T, WS_H2T)
    srd(a, 16, 4, 3840*4, WS_MOD)
    a("s_mov_b32 s20, 0")
    for j in range(10):
        a(f"buffer_load_dwordx2 v[{8+2*j}:{9+2*j}], v3, s[8:11], s20 offen")
        a(f"s_add_u32 s20, s20, {64*4096}")
    a(f"s_movk_i32 s21, {3*640*4}")
    a(f"s_movk_i32 s22, {4*640*4}")
    for j in range(10):
        a(f"buffer_load_dword v{28+j}, v5, s[16:19], s21 offen offset:{256*j}")
        a(f"buffer_load_dword v{38+j}, v5, s[16:19], s22 offen offset:{256*j}")
    a("s_mov_b32 s23, 0xffff0000")
    S = [48, 49, 50, 51]
    for v in S:
        a(f"v_mov_b32 v{v}, 0")
    a("s_waitcnt vmcnt(20)")
    def unpack(j, base):
        a(f"v_lshlrev_b32 v{base}, 16, v{8+2*j}")
        a(f"v_and_b32 v{base+1}, s23, v{8+2*j}")
        a(f"v_lshlrev_b32 v{base+2}, 16, v{9+2*j}")
        a(f"v_and_b32 v{base+3}, s23, v{9+2*j}")
    for j in range(10):
        unpack(j, 56)
        for i in range(4):
            a(f"v_add_f32 v{S[i]}, v{S[i]}, v{56+i}")
    allreduce64(a, S, [52, 53, 54, 55])
    a(f"s_mov_b32 s24, {0x3acccccd}")
    for v in S:
        a(f"v_mul_f32 v{v}, s24, v{v}")
    V = [60, 61, 62, 63]
    for v in V:
        a(f"v_mov_b32 v{v}, 0")
    for j in range(10):
        unpack(j, 56)
        for i in range(4):
            a(f"v_sub_f32 v{56+i}, v{56+i}, v{S[i]}")
            a(f"v_fmac_f32 v{V[i]}, v{56+i}, v{56+i}")
    allreduce64(a, V, [52, 53, 54, 55])
    RC = [64, 65, 66, 67]
    for i in range(4):
        a(f"v_mul_f32 v{V[i]}, s24, v{V[i]}")
        a(f"v_cvt_pk_bf16_f32 v52, v{S[i]}, v{V[i]}")
        a(f"v_lshlrev_b32 v{S[i]}, 16, v52")
        a(f"v_and_b32 v{V[i]}, s23, v52")
        a(f"v_add_f32 v{V[i]}, {0x3727c5ac}, v{V[i]}")
        a(f"v_cvt_pk_bf16_f32 v{V[i]}, v{V[i]}, v{V[i]}")
        a(f"v_lshlrev_b32 v{V[i]}, 16, v{V[i]}")
        a(f"v_sqrt_f32 v{V[i]}, v{V[i]}")
        a("s_nop 0")
        a(f"v_cvt_pk_bf16_f32 v{V[i]}, v{V[i]}, v{V[i]}")
        a(f"v_lshlrev_b32 v{V[i]}, 16, v{V[i]}")
        a(f"v_rcp_f32 v{RC[i]}, v{V[i]}")
    a("s_waitcnt vmcnt(0)")
    a("s_mov_b32 s20, 0")
    for j in range(10):
        a(f"v_add_f32 v{38+j}, 1.0, v{38+j}")
        a(f"v_cvt_pk_bf16_f32 v{38+j}, v{38+j}, v{38+j}")
        a(f"v_lshlrev_b32 v{38+j}, 16, v{38+j}")
        unpack(j, 56)
        for i in range(4):
            a(f"v_sub_f32 v{56+i}, v{56+i}, v{S[i]}")
        for h in range(2):
            a(f"v_cvt_pk_bf16_f32 v52, v{56+2*h}, v{57+2*h}")
            a(f"v_lshlrev_b32 v{56+2*h}, 16, v52")
            a(f"v_and_b32 v{57+2*h}, s23, v52")
        for i in range(4):
            a(f"v_mul_f32 v{68+i}, v{56+i}, v{RC[i]}")
            a(f"v_fma_f32 v{56+i}, -v{68+i}, v{V[i]}, v{56+i}")
            a(f"v_fmac_f32 v{68+i}, v{56+i}, v{RC[i]}")
        for h in range(2):
            a(f"v_cvt_pk_bf16_f32 v52, v{68+2*h}, v{69+2*h}")
            a(f"v_lshlrev_b32 v{68+2*h}, 16, v52")
            a(f"v_and_b32 v{69+2*h}, s23, v52")
        for i in range(4):
            a(f"v_mul_f32 v{68+i}, v{68+i}, v{38+j}")
        for h in range(2):
            a(f"v_cvt_pk_bf16_f32 v52, v{68+2*h}, v{69+2*h}")
            a(f"v_lshlrev_b32 v{68+2*h}, 16, v52")
            a(f"v_and_b32 v{69+2*h}, s23, v52")
        for i in range(4):
            a(f"v_add_f32 v{68+i}, v{68+i}, v{28+j}")
        a(f"v_cvt_pk_bf16_f32 v{8+2*j}, v68, v69")
        a(f"v_cvt_pk_bf16_f32 v{9+2*j}, v70, v71")
        a(f"buffer_store_dwordx2 v[{8+2*j}:{9+2*j}], v3, s[12:15], s20 offen")
        a(f"s_add_u32 s20, s20, {64*4096}")
    a.label("ln2_done")
    a("s_endpgm")
    kdesc(a, nm, 72, 32)

G1_NT = 14
def gen_gemm1(a):
    nm = "gemm1_kernel"
    kstart(a, nm)
    a(f"s_cmp_ge_u32 s2, {16*G1_NT}")
    a("s_cbranch_scc1 g1_done")
    a(f"s_load_dwordx2 s[4:5], s[0:1], {KA['ws']}")
    a(f"s_load_dwordx2 s[6:7], s[0:1], {KA['w1']}")
    a("s_and_b32 s20, s2, 7")
    a("s_lshr_b32 s21, s2, 3")
    a("s_and_b32 s22, s21, 1")
    a("s_lshl_b32 s20, s20, 1")
    a("s_add_u32 s20, s20, s22")
    a("s_lshr_b32 s21, s21, 1")
    a("s_lshl_b32 s24, s20, 8")
    a("s_lshl_b32 s25, s21, 8")
    a("v_and_b32 v1, 63, v0")
    a("v_lshrrev_b32 v2, 6, v0")
    a("s_nop 0")
    a("v_readfirstlane_b32 s26, v2")
    a("v_lshrrev_b32 v3, 4, v1")
    a("v_and_b32 v4, 15, v1")
    a("v_lshlrev_b32 v5, 4, v2")
    a("v_add_u32 v5, v5, v3")
    a("v_lshlrev_b32 v6, 1, v3")
    a("v_xor_b32 v7, v4, v6")
    a("v_add_u32 v6, 8, v6")
    a("v_xor_b32 v6, v4, v6")
    a("v_lshlrev_b32 v7, 4, v7")
    a("v_lshlrev_b32 v6, 4, v6")
    a("v_lshlrev_b32 v28, 12, v5")
    a("v_add_u32 v24, v28, v7")
    a("v_add_u32 v25, v28, v6")
    a("s_movk_i32 s27, 3456")
    a("v_mul_lo_u32 v28, v5, s27")
    a("v_add_u32 v26, v28, v7")
    a("v_add_u32 v27, v28, v6")
    a("v_lshrrev_b32 v5, 2, v4")
    a("v_lshlrev_b32 v6, 2, v3")
    a("v_add_u32 v5, v5, v6")
    a("v_and_b32 v6, 7, v5")
    a("v_and_b32 v7, 3, v1")
    a("v_lshlrev_b32 v7, 3, v7")
    a("v_lshlrev_b32 v5, 8, v5")
    a("v_add_u32 v5, v5, v7")
    a("v_lshrrev_b32 v28, 1, v2")
    a("v_and_b32 v29, 1, v2")
    a("v_lshlrev_b32 v28, 2, v28")
    a("v_lshlrev_b32 v29, 2, v29")
    for i in range(4):
        a(f"v_add_u32 v30, {i}, v28")
        a("v_xor_b32 v30, v30, v6")
        a("v_lshlrev_b32 v30, 5, v30")
        a(f"v_add_u32 v{8+i}, v30, v5")
        a(f"v_add_u32 v{12+i}, 0x10000, v{8+i}")
        a(f"v_add_u32 v30, {i}, v29")
        a("v_xor_b32 v30, v30, v6")
        a("v_lshlrev_b32 v30, 5, v30")
        a(f"v_add_u32 v{16+i}, v30, v5")
        a(f"v_add_u32 v{20+i}, 0x10000, v{16+i}")
    for r in range(64, 128):
        a(f"v_mov_b32 v{r}, 0")
    a("s_waitcnt lgkmcnt(0)")
    srd(a, 8, 4, SZ_T, WS_H2T)
    srd(a, 12, 6, 640*1728*2)
    srd(a, 16, 4, SZ_H1T, WS_H1T)
    a("s_lshl_b32 s28, s26, 12")
    def issue(st):
        slot = st & 3
        k0 = 64*st
        for i in range(4):
            a(f"s_add_u32 s29, s28, {slot*32768 + i*1024}")
            a("s_mov_b32 m0, s29")
            a(f"s_add_u32 s30, s24, {(k0+4*i)*4096}")
            a(f"buffer_load_dwordx4 v{24+(i&1)}, s[8:11], s30 offen lds")
        for i in range(4):
            a(f"s_add_u32 s29, s28, {slot*32768 + 16384 + i*1024}")
            a("s_mov_b32 m0, s29")
            a(f"s_add_u32 s30, s25, {(k0+4*i)*3456}")
            a(f"buffer_load_dwordx4 v{26+(i&1)}, s[12:15], s30 offen lds")
    NIT = 10
    for st in range(3):
        issue(st)
    FR = [32, 128]
    def rd(st, ks, buf):
        slot = st & 3
        ab = 8 if slot < 2 else 12
        bb = 16 if slot < 2 else 20
        so = (slot & 1) * 32768
        f = FR[buf]
        for i in range(4):
            for h in range(2):
                a(f"ds_read_b64_tr_b16 v[{f+4*i+2*h}:{f+4*i+2*h+1}], v{ab+i} offset:{so + (32*ks+16*h)*256}")
        for i in range(4):
            for h in range(2):
                a(f"ds_read_b64_tr_b16 v[{f+16+4*i+2*h}:{f+16+4*i+2*h+1}], v{bb+i} offset:{so + 16384 + (32*ks+16*h)*256}")
    def mm(buf):
        f = FR[buf]
        for i in range(4):
            for j in range(4):
                acc = 64 + 4*(4*i + j)
                a(f"v_mfma_f32_16x16x32_bf16 v[{acc}:{acc+3}], v[{f+4*i}:{f+4*i+3}], v[{f+16+4*j}:{f+16+4*j+3}], v[{acc}:{acc+3}]")
    for it in range(NIT):
        ahead = min(2, NIT - 1 - it)
        a(f"s_waitcnt vmcnt({8*ahead})")
        a("s_barrier")
        if it + 3 < NIT:
            issue(it + 3)
        rd(it, 0, 0)
        rd(it, 1, 1)
        a("s_waitcnt lgkmcnt(15)")
        mm(0)
        a("s_waitcnt lgkmcnt(0)")
        mm(1)
    a("s_nop 15")
    a("v_lshrrev_b32 v28, 1, v2")
    a("v_and_b32 v29, 1, v2")
    a("v_lshlrev_b32 v29, 6, v29")
    a("v_add_u32 v29, v29, v4")
    a("s_lshl_b32 s29, s21, 7")
    a("v_add_u32 v29, s29, v29")
    a("v_lshlrev_b32 v29, 12, v29")
    a("v_lshlrev_b32 v28, 7, v28")
    a("v_lshlrev_b32 v30, 3, v3")
    a("v_add3_u32 v29, v29, v28, v30")
    a("v_add_u32 v29, s24, v29")
    for j in range(4):
        a(f"s_mov_b32 s30, {65536*j}")
        for i in range(4):
            acc = 64 + 4*(4*i + j)
            for r in range(4):
                a(f"v_max_f32 v{acc+r}, 0, v{acc+r}")
            a(f"v_cvt_pk_bf16_f32 v{acc}, v{acc}, v{acc+1}")
            a(f"v_cvt_pk_bf16_f32 v{acc+1}, v{acc+2}, v{acc+3}")
            a(f"buffer_store_dwordx2 v[{acc}:{acc+1}], v29, s[16:19], s30 offen offset:{32*i}")
    a.label("g1_done")
    a("s_endpgm")
    kdesc(a, nm, 160, 40)

def gen_gemm2(a):
    nm = "gemm2_kernel"
    kstart(a, nm)
    a("s_cmp_ge_u32 s2, 256")
    a("s_cbranch_scc1 g2_done")
    a(f"s_load_dwordx2 s[4:5], s[0:1], {KA['ws']}")
    a(f"s_load_dwordx2 s[6:7], s[0:1], {KA['w2']}")
    a(f"s_load_dwordx2 s[32:33], s[0:1], {KA['out']}")
    a("s_and_b32 s20, s2, 7")
    a("s_lshr_b32 s21, s2, 3")
    a("s_and_b32 s22, s21, 3")
    a("s_lshl_b32 s20, s20, 2")
    a("s_add_u32 s20, s20, s22")
    a("s_lshr_b32 s21, s21, 2")
    a("s_lshl_b32 s24, s20, 7")
    a("s_mul_i32 s25, s21, 160")
    a("v_and_b32 v1, 63, v0")
    a("v_lshrrev_b32 v2, 6, v0")
    a("s_nop 0")
    a("v_readfirstlane_b32 s26, v2")
    a("v_lshrrev_b32 v3, 4, v1")
    a("v_and_b32 v4, 15, v1")
    ST = 18432
    NS = 6
    a("s_cmp_lt_u32 s26, 2")
    a("s_cbranch_scc0 g2_setupH")
    a("s_mul_i32 s27, s26, 320")
    a("s_movk_i32 s28, 6554")
    a("s_movk_i32 s29, 1280")
    for i in range(5):
        a(f"v_add_u32 v5, {64*i}, v1")
        a("v_add_u32 v5, s27, v5")
        a("v_mul_lo_u32 v6, v5, s28")
        a("v_lshrrev_b32 v6, 16, v6")
        a("v_mul_u32_u24 v7, 10, v6")
        a("v_sub_u32 v7, v5, v7")
        a("v_mul_lo_u32 v6, v6, s29")
        a("v_lshlrev_b32 v7, 4, v7")
        a(f"v_add_u32 v{8+i}, v6, v7")
    a("s_mul_i32 s28, s26, 5120")
    a("s_branch g2_setup_done")
    a.label("g2_setupH")
    a("s_sub_u32 s27, s26, 2")
    for r in (9, 10, 11, 12):
        a(f"v_mov_b32 v{r}, 0")
    a("v_lshrrev_b32 v5, 3, v1")
    a("v_and_b32 v6, 7, v1")
    a("v_and_b32 v7, 3, v3")
    a("v_lshlrev_b32 v7, 1, v7")
    a("v_xor_b32 v6, v6, v7")
    a("v_lshlrev_b32 v6, 4, v6")
    a("s_lshl_b32 s28, s27, 5")
    a("v_add_u32 v5, s28, v5")
    a("v_lshlrev_b32 v5, 12, v5")
    a("v_add_u32 v8, v5, v6")
    a("s_lshl_b32 s28, s27, 12")
    a("s_add_u32 s28, s28, 10240")
    a.label("g2_setup_done")
    a("v_lshrrev_b32 v5, 2, v4")
    a("v_lshlrev_b32 v6, 2, v3")
    a("v_add_u32 v5, v5, v6")
    a("v_and_b32 v7, 3, v1")
    a("v_lshlrev_b32 v7, 3, v7")
    a("v_mul_u32_u24 v14, 160, v5")
    a("v_add_u32 v14, v14, v7")
    a(f"v_add_u32 v15, {3*ST}, v14")
    a("v_lshrrev_b32 v6, 1, v5")
    a("v_and_b32 v6, 3, v6")
    a("v_xor_b32 v6, v6, v2")
    a("v_lshlrev_b32 v6, 5, v6")
    a("v_lshlrev_b32 v16, 7, v5")
    a("v_add3_u32 v16, v16, v6, v7")
    a(f"v_add_u32 v17, {3*ST}, v16")
    for r in range(20, 40):
        a(f"v_mov_b32 v{r}, 0")
    a("s_waitcnt lgkmcnt(0)")
    srd(a, 8, 6, 1728*640*2)
    srd(a, 12, 4, SZ_H1T, WS_H1T)
    srd(a, 16, 4, SZ_T, WS_X1T)
    srd(a, 36, 4, 3840*4, WS_MOD)
    srd(a, 40, 32, 2048*640*2)
    NIT = 27
    uid = [0]
    def issue(st):
        slot = st % NS
        k0 = 64*st
        u = uid[0]; uid[0] += 1
        a("s_cmp_lt_u32 s26, 2")
        a(f"s_cbranch_scc0 g2_iH{u}")
        for i in range(5):
            a(f"s_add_u32 s29, s28, {slot*ST + i*1024}")
            a("s_mov_b32 m0, s29")
            a(f"s_add_u32 s30, s25, {k0*1280}")
            a(f"buffer_load_dwordx4 v{8+i}, s[8:11], s30 offen lds")
        a(f"s_branch g2_iD{u}")
        a.label(f"g2_iH{u}")
        for i in range(4):
            a(f"s_add_u32 s29, s28, {slot*ST + i*1024}")
            a("s_mov_b32 m0, s29")
            a(f"s_add_u32 s30, s24, {(k0+8*i)*4096}")
            a(f"buffer_load_dwordx4 v8, s[12:15], s30 offen lds")
        a.label(f"g2_iD{u}")
    def wait(ahead):
        u = uid[0]; uid[0] += 1
        a("s_cmp_lt_u32 s26, 2")
        a(f"s_cbranch_scc0 g2_wH{u}")
        a(f"s_waitcnt vmcnt({5*ahead})")
        a(f"s_branch g2_wD{u}")
        a.label(f"g2_wH{u}")
        a(f"s_waitcnt vmcnt({4*ahead})")
        a.label(f"g2_wD{u}")
    for st in range(NS - 1):
        issue(st)
    FR = [40, 64]
    def rd(st, ks, buf):
        slot = st % NS
        wb = 14 if slot < 3 else 15
        hb = 16 if slot < 3 else 17
        so = (slot % 3) * ST
        f = FR[buf]
        for h in range(2):
            a(f"ds_read_b64_tr_b16 v[{f+20+2*h}:{f+21+2*h}], v{hb} offset:{so + 10240 + (32*ks+16*h)*128}")
        for i in range(5):
            for h in range(2):
                a(f"ds_read_b64_tr_b16 v[{f+4*i+2*h}:{f+4*i+2*h+1}], v{wb} offset:{so + (32*ks+16*h)*160 + 32*i}")
    def mm(buf):
        f = FR[buf]
        for i in range(5):
            acc = 20 + 4*i
            a(f"v_mfma_f32_16x16x32_bf16 v[{acc}:{acc+3}], v[{f+4*i}:{f+4*i+3}], v[{f+20}:{f+23}], v[{acc}:{acc+3}]")
    for it in range(NIT):
        ahead = min(NS - 2, NIT - 1 - it)
        wait(ahead)
        a("s_barrier")
        if it + NS - 1 < NIT:
            issue(it + NS - 1)
        rd(it, 0, 0)
        rd(it, 1, 1)
        a("s_waitcnt lgkmcnt(12)")
        mm(0)
        a("s_waitcnt lgkmcnt(0)")
        mm(1)
    a("v_lshlrev_b32 v5, 4, v2")
    a("v_add_u32 v5, v5, v4")
    a("v_lshlrev_b32 v6, 1, v5")
    a("v_add_u32 v6, s24, v6")
    a("s_mul_i32 s27, s21, 80")
    a("v_lshlrev_b32 v7, 2, v3")
    a("v_add_u32 v7, s27, v7")
    a("v_lshlrev_b32 v8, 12, v7")
    a("v_add_u32 v8, v8, v6")
    a("v_lshlrev_b32 v9, 2, v7")
    a(f"s_movk_i32 s29, {5*640*4}")
    for i in range(5):
        a(f"buffer_load_dwordx4 v[{40+4*i}:{43+4*i}], v9, s[36:39], s29 offen offset:{64*i}")
    for i in range(5):
        for r in range(4):
            a(f"s_mov_b32 s30, {(16*i+r)*4096}")
            a(f"buffer_load_ushort v{60+4*i+r}, v8, s[16:19], s30 offen")
    a("s_lshl_b32 s30, s20, 6")
    a("v_add_u32 v10, s30, v5")
    a("s_movk_i32 s31, 1280")
    a("v_mul_lo_u32 v10, v10, s31")
    a("v_lshlrev_b32 v11, 1, v7")
    a("v_add_u32 v10, v10, v11")
    a("s_mov_b32 s31, 0xffff0000")
    a("s_waitcnt vmcnt(0)")
    for i in range(5):
        acc = 20 + 4*i
        for hh in range(2):
            r0, r1 = acc + 2*hh, acc + 2*hh + 1
            a(f"v_cvt_pk_bf16_f32 v12, v{r0}, v{r1}")
            a("v_lshlrev_b32 v13, 16, v12")
            a("v_and_b32 v12, s31, v12")
            a(f"v_mul_f32 v13, v13, v{40+4*i+2*hh}")
            a(f"v_mul_f32 v12, v12, v{41+4*i+2*hh}")
            a("v_cvt_pk_bf16_f32 v12, v13, v12")
            a("v_lshlrev_b32 v13, 16, v12")
            a("v_and_b32 v12, s31, v12")
            a(f"v_lshlrev_b32 v18, 16, v{60+4*i+2*hh}")
            a(f"v_lshlrev_b32 v19, 16, v{61+4*i+2*hh}")
            a("v_add_f32 v13, v13, v18")
            a("v_add_f32 v12, v12, v19")
            a(f"v_cvt_pk_bf16_f32 v{acc+hh}, v13, v12")
        a(f"buffer_store_dwordx2 v[{acc}:{acc+1}], v10, s[40:43], 0 offen offset:{32*i}")
    a.label("g2_done")
    a("s_endpgm")
    kdesc(a, nm, 88, 48)

def main():
    a = Asm()
    hdr = open(f"cdna_kernels/{NAME}.s.ref").read().split("\n")
    for ln in hdr:
        if ln.startswith("; @launch") or ln.startswith("; Override") or ln.startswith("; grid="):
            continue
        if not ln.startswith(";"):
            break
        a.raw(ln)
    a.raw(f"; @launch kernel=prep_kernel grid=({N_KGEN+N_LN1+N_MOD},1,1) block=(256,1,1) lds=84480")
    a.raw("; @launch kernel=conv_kernel grid=(640,1,1) block=(256,1,1) lds=46208")
    a.raw("; @launch kernel=ln2_kernel grid=(128,1,1) block=(256,1,1) lds=0")
    a.raw(f"; @launch kernel=gemm1_kernel grid=({16*G1_NT},1,1) block=(256,1,1) lds=131072")
    a.raw("; @launch kernel=gemm2_kernel grid=(256,1,1) block=(256,1,1) lds=110592")
    a.raw('.amdgcn_target "amdgcn-amd-amdhsa--gfx950"')
    a.raw(".text")
    gen_prep(a)
    gen_conv(a)
    gen_ln2(a)
    gen_gemm1(a)
    gen_gemm2(a)
    out = sys.argv[1] if len(sys.argv) > 1 else f"cdna_kernels/{NAME}.s"
    open(out, "w").write(a.text())

if __name__ == "__main__":
    main()
```

```python
import sys

NAME = "adaLN_cond__ssm_conv_s4__dense_activation_relu__prompt"

PITCH = 4096 + 256
WS_MOD = 0
WS_XT  = 0x10000
SZ_T   = 640 * PITCH
WS_XNT = WS_XT + SZ_T
WS_KSC = 0x8000
WS_KR  = WS_XNT + SZ_T
SZ_KR  = 640 * 2048 * 2
WS_X1T = WS_KR + SZ_KR
WS_H2T = WS_X1T + SZ_T
WS_H1T = WS_H2T + SZ_T
SZ_H1T = 1728 * PITCH

KA = dict(u=0, Are=8, Aim=16, Bre=24, Bim=32, Cre=40, Cim=48, logdt=56, Dskip=64,
          Bx=72, w1=80, w2=88, c=96, wmod=104, out=112, dbg=120, ws=128)

class Asm:
    def __init__(self):
        self.lines = []
    def __call__(self, s=""):
        for ln in s.split("\n"):
            self.lines.append("    " + ln.strip() if ln.strip() and not ln.strip().endswith(":") else ln.strip())
    def label(self, s):
        self.lines.append(s + ":")
    def raw(self, s):
        self.lines.append(s)
    def text(self):
        return "\n".join(self.lines) + "\n"

def srd(a, sd, sbase, nbytes, off=0):
    if off:
        a(f"s_add_u32 s{sd}, s{sbase}, {off}")
        a(f"s_addc_u32 s{sd+1}, s{sbase+1}, 0")
    else:
        a(f"s_mov_b32 s{sd}, s{sbase}")
        a(f"s_mov_b32 s{sd+1}, s{sbase+1}")
    a(f"s_mov_b32 s{sd+2}, {nbytes}")
    a(f"s_mov_b32 s{sd+3}, 0x00020000")

def kdesc(a, name, vgpr, sgpr):
    acc = (vgpr + 3) // 4 * 4
    a.raw(f""".section .rodata,"a"
.p2align 6
.amdhsa_kernel {name}
  .amdhsa_next_free_vgpr {vgpr}
  .amdhsa_next_free_sgpr {sgpr}
  .amdhsa_accum_offset {acc}
  .amdhsa_group_segment_fixed_size 0
  .amdhsa_kernarg_size 136
  .amdhsa_user_sgpr_count 2
  .amdhsa_user_sgpr_kernarg_segment_ptr 1
  .amdhsa_system_sgpr_workgroup_id_x 1
.end_amdhsa_kernel
.text""")

def kstart(a, name):
    a.raw(f".globl {name}\n.p2align 8\n.type {name},@function\n{name}:")

STAMP = None
class Stamper:
    def __init__(self, a, kname, vreg, sbase=92):
        self.a, self.v, self.sb = a, vreg, sbase
        self.on = STAMP is not None and STAMP[0] == kname
        self.n = 0
        if self.on:
            a(f"v_mov_b32 v{vreg}, 0")
    def __call__(self, tag=""):
        if not self.on: return
        a, sb = self.a, self.sb
        a(f"s_memtime s[{sb}:{sb+1}]")
        a("s_waitcnt lgkmcnt(0)")
        a(f"v_writelane_b32 v{self.v}, s{sb}, {self.n}")
        self.n += 1
    def flush(self, wgreg="s2"):
        if not self.on: return
        a, sb = self.a, self.sb
        a(f"s_cmp_lg_u32 {wgreg}, {STAMP[1]}")
        a(f"s_cbranch_scc1 stamp_skip")
        a(f"s_load_dwordx2 s[{sb}:{sb+1}], s[0:1], {KA['dbg']}")
        a("s_waitcnt lgkmcnt(0)")
        a(f"s_mov_b32 s{sb+2}, 256")
        a(f"s_mov_b32 s{sb+3}, 0x00020000")
        a(f"v_lshrrev_b32 v1, 6, v0")
        a(f"v_cmp_eq_u32 vcc, {STAMP[2]}, v1")
        a(f"s_and_saveexec_b64 s[{sb+4}:{sb+5}], vcc")
        a("s_cbranch_execz stamp_skip")
        a("v_and_b32 v1, 63, v0")
        a("v_lshlrev_b32 v1, 2, v1")
        a(f"buffer_store_dword v{self.v}, v1, s[{sb}:{sb+3}], 0 offen")
        a.label("stamp_skip")

def wave_max(a, v, t):
    for ctl in ("quad_perm:[1,0,3,2]", "quad_perm:[2,3,0,1]", "row_half_mirror", "row_mirror"):
        a("s_nop 1")
        a(f"v_max_f32_dpp v{v}, v{v}, v{v} {ctl} row_mask:0xf bank_mask:0xf")
    for swap in ("v_permlane16_swap_b32", "v_permlane32_swap_b32"):
        a(f"v_mov_b32 v{t}, v{v}")
        a("s_nop 1")
        a(f"{swap} v{v}, v{t}")
        a("s_nop 1")
        a(f"v_max_f32 v{v}, v{v}, v{t}")

def pow2_scale(a, vmax, vs, vi):
    a(f"v_lshrrev_b32 v{vi}, 23, v{vmax}")
    a(f"v_max_u32 v{vi}, 15, v{vi}")
    a(f"v_min_u32 v{vi}, 0xfe, v{vi}")
    a(f"v_sub_u32 v{vs}, 0x10c, v{vi}")
    a(f"v_lshlrev_b32 v{vs}, 23, v{vs}")
    a(f"v_subrev_u32 v{vi}, 14, v{vi}")
    a(f"v_lshlrev_b32 v{vi}, 23, v{vi}")

LOG2E = 0x3fb8aa3b
INV2PI = 0x3e22f983

N_KGEN, N_LN1, N_MOD = 640, 128, 120
def gen_prep(a):
    nm = "prep_kernel"
    kstart(a, nm)
    a(f"s_cmp_ge_u32 s2, {N_KGEN+N_LN1+N_MOD}")
    a("s_cbranch_scc1 prep_done")
    a(f"s_cmp_lt_u32 s2, {N_MOD}")
    a("s_cbranch_scc1 prep_mod")
    a(f"s_cmp_lt_u32 s2, {N_MOD+N_LN1}")
    a("s_cbranch_scc1 prep_ln1")
    a(f"s_sub_u32 s2, s2, {N_MOD+N_LN1}")
    st = Stamper(a, nm, 96)
    st("start")
    a("s_load_dwordx16 s[4:19], s[0:1], 8")
    a(f"s_load_dwordx2 s[20:21], s[0:1], {KA['ws']}")
    a("v_and_b32 v1, 63, v0")
    a("v_lshrrev_b32 v2, 6, v0")
    a("v_and_b32 v3, 15, v1")
    a("v_lshrrev_b32 v4, 4, v1")
    a("s_lshl_b32 s3, s2, 8")
    a("v_lshlrev_b32 v5, 6, v2")
    a("v_lshlrev_b32 v6, 4, v4")
    a("v_add3_u32 v5, v5, v6, s3")
    a("s_waitcnt lgkmcnt(0)")
    for i in range(6):
        srd(a, 24 + 4*i, 4 + 2*i, 640*128*2)
    srd(a, 48, 16, 640*2)
    for i in range(6):
        a(f"buffer_load_dwordx4 v[{8+4*i}:{11+4*i}], v5, s[{24+4*i}:{27+4*i}], 0 offen")
    a("s_lshl_b32 s3, s2, 1")
    a("v_mov_b32 v6, s3")
    a("buffer_load_ushort v7, v6, s[48:51], 0 offen")
    a("s_lshl_b32 s52, s2, 12")
    a(f"s_add_u32 s52, s52, {WS_KR}")
    a("s_add_u32 s52, s20, s52")
    a("s_addc_u32 s53, s21, 0")
    a("s_mov_b32 s54, 4096")
    a("s_mov_b32 s55, 0x00020000")
    a(f"s_mov_b32 s56, {LOG2E}")
    a(f"s_mov_b32 s57, {INV2PI}")
    a("s_mov_b32 s58, 0xffff0000")
    a("v_cvt_f32_u32 v32, v3")
    a("v_lshlrev_b32 v33, 4, v3")
    a("v_cvt_f32_u32 v33, v33")
    for r in range(40, 57):
        a(f"v_mov_b32 v{r}, 0")
    a("s_waitcnt vmcnt(0)")
    st("loaded")
    srd(a, 48, 20, 640*4, WS_KSC)
    a("v_lshlrev_b32 v7, 16, v7")
    a("v_mul_f32 v7, s56, v7")
    a("v_exp_f32 v7, v7")
    a("s_nop 0")
    a("v_cvt_pk_bf16_f32 v7, v7, v7")
    a("v_lshlrev_b32 v7, 16, v7")
    ARE, AIM, BRE, BIM, CRE, CIM = 57, 58, 59, 60, 61, 62
    WR, WI, AR, PH = 63, 64, 65, 66
    T0, T1, T2, T3, T4, T5 = 67, 68, 69, 70, 71, 72
    EHR, EHI, ELR, ELI = 73, 74, 75, 76
    def ext(dst, base, s):
        r = base + s // 2
        if s % 2 == 0:
            a(f"v_lshlrev_b32 v{dst}, 16, v{r}")
        else:
            a(f"v_and_b32 v{dst}, s58, v{r}")
    for s in range(8):
        ext(ARE, 8, s); ext(AIM, 12, s); ext(BRE, 16, s); ext(BIM, 20, s); ext(CRE, 24, s); ext(CIM, 28, s)
        a(f"v_mul_f32 v{ARE}, v7, v{ARE}")
        a(f"v_mul_f32 v{AIM}, v7, v{AIM}")
        a(f"v_mul_f32 v{BRE}, v7, v{BRE}")
        a(f"v_mul_f32 v{BIM}, v7, v{BIM}")
        a(f"v_mul_f32 v{T0}, v{CIM}, v{BIM}")
        a(f"v_fma_f32 v{WR}, v{CRE}, v{BRE}, -v{T0}")
        a(f"v_mul_f32 v{T0}, v{CIM}, v{BRE}")
        a(f"v_fma_f32 v{WI}, v{CRE}, v{BIM}, v{T0}")
        a(f"v_mul_f32 v{AR}, s56, v{ARE}")
        a(f"v_mul_f32 v{PH}, s57, v{AIM}")
        a(f"v_mul_f32 v{T0}, v{AR}, v33")
        a(f"v_mul_f32 v{T1}, v{PH}, v33")
        a(f"v_mul_f32 v{T2}, v{AR}, v32")
        a(f"v_mul_f32 v{T3}, v{PH}, v32")
        a(f"v_fract_f32 v{T1}, v{T1}")
        a(f"v_fract_f32 v{T3}, v{T3}")
        a(f"v_exp_f32 v{T0}, v{T0}")
        a(f"v_exp_f32 v{T2}, v{T2}")
        a(f"v_sin_f32 v{T4}, v{T1}")
        a(f"v_cos_f32 v{T1}, v{T1}")
        a(f"v_sin_f32 v{T5}, v{T3}")
        a(f"v_cos_f32 v{T3}, v{T3}")
        a("s_nop 0")
        a(f"v_mul_f32 v{EHR}, v{T0}, v{T1}")
        a(f"v_mul_f32 v{EHI}, v{T0}, v{T4}")
        a(f"v_mul_f32 v{ELR}, v{T2}, v{T3}")
        a(f"v_mul_f32 v{ELI}, v{T2}, v{T5}")
        for seg in range(4):
            AR_, AI_ = 77 + 2*(seg & 1), 78 + 2*(seg & 1)
            BR_, BI_ = 81 + 2*(seg & 1), 82 + 2*(seg & 1)
            a(f"v_mul_f32 v{T0}, v{WI}, v{EHI}")
            a(f"v_fma_f32 v{AR_}, v{WR}, v{EHR}, -v{T0}")
            a(f"v_mul_f32 v{T0}, v{WI}, v{EHR}")
            a(f"v_fma_f32 v{AI_}, -v{WR}, v{EHI}, -v{T0}")
            a(f"v_mov_b32 v{BR_}, v{ELR}")
            a(f"v_mov_b32 v{BI_}, v{ELI}")
            a(f"v_mul_f32 v{T0}, v{EHI}, v{EHI}")
            a(f"v_add_f32 v{T1}, v{EHR}, v{EHR}")
            a(f"v_fma_f32 v{EHR}, v{EHR}, v{EHR}, -v{T0}")
            a(f"v_mul_f32 v{EHI}, v{T1}, v{EHI}")
            acc = 40 + 4*seg
            a(f"v_mfma_f32_16x16x4_f32 v[{acc}:{acc+3}], v{AR_}, v{BR_}, v[{acc}:{acc+3}]")
            a(f"v_mfma_f32_16x16x4_f32 v[{acc}:{acc+3}], v{AI_}, v{BI_}, v[{acc}:{acc+3}]")
            if seg < 3:
                a(f"v_mul_f32 v{T0}, v{ELI}, v{ELI}")
                a(f"v_add_f32 v{T1}, v{ELR}, v{ELR}")
                a(f"v_fma_f32 v{ELR}, v{ELR}, v{ELR}, -v{T0}")
                a(f"v_mul_f32 v{ELI}, v{T1}, v{ELI}")
        a(f"v_fma_f32 v56, v{WR}, v{EHR}, v56")
        a(f"v_fma_f32 v56, -v{WI}, v{EHI}, v56")
        st("step")
    a("s_nop 15")
    a("v_lshlrev_b32 v57, 12, v2")
    a("v_lshlrev_b32 v58, 8, v4")
    a("v_lshlrev_b32 v59, 2, v3")
    a("v_add3_u32 v57, v57, v58, v59")
    for seg in range(4):
        for r in range(4):
            a(f"ds_write_b32 v57, v{40+4*seg+r} offset:{seg*1024 + r*64}")
    a("v_lshlrev_b32 v58, 2, v0")
    a("ds_write_b32 v58, v56 offset:16384")
    a("s_waitcnt lgkmcnt(0)")
    a("s_barrier")
    TB = 17408
    MXB = TB + 1280*4
    for seg in range(4):
        for w in range(4):
            a(f"ds_read_b32 v{60+4*seg+w}, v58 offset:{w*4096 + seg*1024}")
    a("v_mov_b32 v59, 0")
    for i in range(16):
        a(f"ds_read_b32 v{76+i}, v59 offset:{16384 + (i*16+8)*4}")
    a("s_waitcnt lgkmcnt(0)")
    for seg in range(4):
        b = 60 + 4*seg
        a(f"v_add_f32 v{b}, v{b}, v{b+1}")
        a(f"v_add_f32 v{b+2}, v{b+2}, v{b+3}")
        a(f"v_add_f32 v{b}, v{b}, v{b+2}")
        a(f"ds_write_b32 v58, v{b} offset:{TB + seg*1024}")
    for i in range(1, 16):
        a(f"v_add_f32 v76, v76, v{76+i}")
    a(f"ds_write_b32 v59, v76 offset:{TB + (1024+128)*4}")
    a("v_max3_f32 v77, |v60|, |v64|, |v68|")
    a("v_max3_f32 v77, v77, |v72|, |v76|")
    wave_max(a, 77, 78)
    a("v_lshlrev_b32 v78, 2, v2")
    a(f"ds_write_b32 v78, v77 offset:{MXB}")
    a("s_waitcnt lgkmcnt(0)")
    a("s_barrier")
    a(f"ds_read_b128 v[80:83], v59 offset:{MXB}")
    a("v_lshlrev_b32 v57, 3, v0")
    a("v_sub_u32 v57, 2047, v57")
    a("s_movk_i32 s59, 0x100")
    for e in range(8):
        L, F, B, A1 = 60, 61, 62, 63
        a(f"v_subrev_u32 v{L}, {e}, v57")
        a(f"v_cvt_f32_u32 v{F}, v{L}")
        a(f"v_cvt_pk_bf16_f32 v{B}, v{F}, v{F}")
        a(f"v_bfe_u32 v{A1}, v{B}, 7, 8")
        a(f"v_subrev_u32 v{A1}, 134, v{A1}")
        a(f"v_lshlrev_b32 v{A1}, 8, v{A1}")
        a(f"v_and_b32 v{B}, 127, v{B}")
        a(f"v_add3_u32 v{A1}, v{A1}, v{B}, 64")
        a(f"v_add_u32 v{A1}, 64, v{A1}")
        a(f"v_cmp_gt_u32 vcc, s59, v{L}")
        a("s_nop 1")
        a(f"v_cndmask_b32 v{A1}, v{A1}, v{L}, vcc")
        a(f"v_lshlrev_b32 v{A1}, 2, v{A1}")
        a(f"ds_read_b32 v{64+e}, v{A1} offset:{TB}")
    a("s_waitcnt lgkmcnt(0)")
    a("v_max3_f32 v80, v80, v81, v82")
    a("v_max_f32 v80, v80, v83")
    pow2_scale(a, 80, 81, 82)
    for p in range(4):
        k0, k1 = 64 + 2*p, 65 + 2*p
        a(f"v_mul_f32 v{k0}, v{k0}, v81")
        a(f"v_mul_f32 v{k1}, v{k1}, v81")
        a(f"v_cvt_f16_f32 v{k0}, v{k0}")
        a(f"v_cvt_f16_f32 v{k1}, v{k1}")
        a(f"v_pack_b32_f16 v{72+p}, v{k0}, v{k1}")
    a("v_lshlrev_b32 v57, 4, v0")
    a("buffer_store_dwordx4 v[72:75], v57, s[52:55], 0 offen")
    st("end")
    st.flush()
    a("v_cmp_eq_u32 vcc, 0, v0")
    a("s_and_saveexec_b64 s[60:61], vcc")
    a("s_cbranch_execz prep_done")
    a("s_lshl_b32 s3, s2, 2")
    a("v_mov_b32 v57, s3")
    a("buffer_store_dword v82, v57, s[48:51], 0 offen")
    a("s_endpgm")

    a.label("prep_ln1")
    a(f"s_sub_u32 s2, s2, {N_MOD}")
    a(f"s_load_dwordx2 s[4:5], s[0:1], {KA['u']}")
    a(f"s_load_dwordx2 s[6:7], s[0:1], {KA['ws']}")
    a("v_lshrrev_b32 v1, 4, v0")
    a("v_and_b32 v2, 15, v0")
    a("s_lshl_b32 s3, s2, 4")
    a("v_add_u32 v3, s3, v1")
    a("v_mul_u32_u24 v3, 1280, v3")
    a("v_lshlrev_b32 v4, 4, v2")
    a("v_add_u32 v3, v3, v4")
    a("s_waitcnt lgkmcnt(0)")
    srd(a, 8, 4, 2048*640*2)
    srd(a, 12, 6, SZ_T, WS_XT)
    srd(a, 16, 6, SZ_T, WS_XNT)
    for j in range(5):
        a(f"buffer_load_dwordx4 v[{8+4*j}:{11+4*j}], v3, s[8:11], 0 offen offset:{256*j}")
    a("s_mov_b32 s21, 0xffff0000")
    a("v_mov_b32 v48, 0")
    a("v_mov_b32 v49, 0")
    a("v_mul_u32_u24 v54, 264, v2")
    a("v_lshlrev_b32 v55, 1, v1")
    a("v_add_u32 v54, v54, v55")
    a("v_lshrrev_b32 v58, 1, v0")
    a("v_and_b32 v59, 1, v0")
    a("v_lshlrev_b32 v60, 5, v58")
    a("v_lshrrev_b32 v61, 3, v58")
    a("v_lshlrev_b32 v61, 3, v61")
    a("v_lshlrev_b32 v62, 4, v59")
    a("v_add3_u32 v60, v60, v61, v62")
    a(f"v_mul_u32_u24 v61, {PITCH}, v58")
    a("v_add_u32 v61, v61, v62")
    a("s_lshl_b32 s3, s2, 5")
    a("v_add_u32 v61, s3, v61")
    a("s_waitcnt vmcnt(0)")
    for j in range(5):
        for p in range(4):
            r = 8 + 4*j + p
            o = j*4224 + 2*p*32
            a(f"ds_write_b16 v54, v{r} offset:{o}")
            a(f"ds_write_b16_d16_hi v54, v{r} offset:{o+32}")
    for r in range(8, 28):
        a(f"v_lshlrev_b32 v50, 16, v{r}")
        a(f"v_and_b32 v51, s21, v{r}")
        a("v_add_f32 v48, v48, v50")
        a("v_add_f32 v49, v49, v51")
    a("v_add_f32 v48, v48, v49")
    def red16(v):
        for ctl in ("quad_perm:[1,0,3,2]", "quad_perm:[2,3,0,1]", "row_half_mirror", "row_mirror"):
            a("s_nop 1")
            a(f"v_add_f32_dpp v{v}, v{v}, v{v} {ctl} row_mask:0xf bank_mask:0xf")
    red16(48)
    a(f"s_mov_b32 s22, {0x3acccccd}")
    a("v_mul_f32 v48, s22, v48")
    a("v_mov_b32 v49, 0")
    a("v_mov_b32 v52, 0")
    for r in range(8, 28):
        a(f"v_lshlrev_b32 v50, 16, v{r}")
        a(f"v_and_b32 v51, s21, v{r}")
        a("v_sub_f32 v50, v50, v48")
        a("v_sub_f32 v51, v51, v48")
        a("v_fmac_f32 v49, v50, v50")
        a("v_fmac_f32 v52, v51, v51")
    a("v_add_f32 v49, v49, v52")
    red16(49)
    a("s_waitcnt lgkmcnt(0)")
    a("s_barrier")
    def readout(srdi):
        for p in range(5):
            a(f"ds_read_b64 v[{28+4*p}:{29+4*p}], v60 offset:{4224*p}")
            a(f"ds_read_b64 v[{30+4*p}:{31+4*p}], v60 offset:{4224*p+8}")
        a("s_mov_b32 s23, 0")
        for p in range(5):
            a(f"s_waitcnt lgkmcnt({8-2*p})")
            a(f"buffer_store_dwordx4 v[{28+4*p}:{31+4*p}], v61, s[{srdi}:{srdi+3}], s23 offen")
            a(f"s_add_u32 s23, s23, {128*PITCH}")
    readout(12)
    a("v_mul_f32 v49, s22, v49")
    a("v_cvt_pk_bf16_f32 v50, v48, v49")
    a("v_lshlrev_b32 v48, 16, v50")
    a("v_and_b32 v49, s21, v50")
    a(f"v_add_f32 v49, {0x3727c5ac}, v49")
    a("v_cvt_pk_bf16_f32 v49, v49, v49")
    a("v_lshlrev_b32 v49, 16, v49")
    a("v_sqrt_f32 v49, v49")
    a("s_nop 0")
    a("v_cvt_pk_bf16_f32 v49, v49, v49")
    a("v_lshlrev_b32 v49, 16, v49")
    a("v_rcp_f32 v53, v49")
    for r in range(8, 28):
        a(f"v_lshlrev_b32 v50, 16, v{r}")
        a(f"v_and_b32 v51, s21, v{r}")
        a("v_sub_f32 v50, v50, v48")
        a("v_sub_f32 v51, v51, v48")
        a("v_cvt_pk_bf16_f32 v50, v50, v51")
        a("v_and_b32 v51, s21, v50")
        a("v_lshlrev_b32 v50, 16, v50")
        a("v_mul_f32 v56, v50, v53")
        a("v_mul_f32 v57, v51, v53")
        a("v_fma_f32 v50, -v56, v49, v50")
        a("v_fma_f32 v51, -v57, v49, v51")
        a("v_fmac_f32 v56, v50, v53")
        a("v_fmac_f32 v57, v51, v53")
        a(f"v_cvt_pk_bf16_f32 v{r}, v56, v57")
    a("s_barrier")
    for j in range(5):
        for p in range(4):
            r = 8 + 4*j + p
            o = j*4224 + 2*p*32
            a(f"ds_write_b16 v54, v{r} offset:{o}")
            a(f"ds_write_b16_d16_hi v54, v{r} offset:{o+32}")
    a("s_waitcnt lgkmcnt(0)")
    a("s_barrier")
    a("s_waitcnt vmcnt(0)")
    readout(16)
    a("s_endpgm")

    a.label("prep_mod")
    a(f"s_load_dwordx4 s[4:7], s[0:1], {KA['c']}")
    a(f"s_load_dwordx2 s[16:17], s[0:1], {KA['ws']}")
    a("v_and_b32 v1, 3, v0")
    a("v_lshrrev_b32 v2, 2, v0")
    a("s_movk_i32 s20, 7680")
    a("v_mul_lo_u32 v3, v2, s20")
    a("v_lshlrev_b32 v4, 4, v1")
    a("s_lshl_b32 s3, s2, 6")
    a("v_add3_u32 v3, v3, v4, s3")
    a("v_lshlrev_b32 v4, 1, v2")
    a("s_waitcnt lgkmcnt(0)")
    srd(a, 8, 4, 1280)
    srd(a, 12, 6, 640*3840*2)
    srd(a, 24, 16, 3840*4, WS_MOD)
    a("s_mov_b32 s23, 0")
    for j in range(10):
        a(f"buffer_load_dwordx4 v[{8+4*j}:{11+4*j}], v3, s[12:15], s23 offen")
        a(f"s_add_u32 s23, s23, {64*7680}")
    for j in range(10):
        a(f"buffer_load_ushort v{48+j}, v4, s[8:11], 0 offen offset:{128*j}")
    a(f"s_mov_b32 s21, {LOG2E}")
    a("s_mov_b32 s22, 0xffff0000")
    for e in range(8):
        a(f"v_mov_b32 v{60+e}, 0")
    a("s_waitcnt vmcnt(0)")
    for j in range(10):
        c = 48 + j
        a(f"v_lshlrev_b32 v{c}, 16, v{c}")
        a(f"v_mul_f32 v58, s21, v{c}")
        a("v_sub_f32 v58, 0, v58")
        a("v_exp_f32 v58, v58")
        a("s_nop 0")
        a("v_add_f32 v58, 1.0, v58")
        a("v_rcp_f32 v58, v58")
        a("s_nop 0")
        a(f"v_mul_f32 v58, v{c}, v58")
        a("v_cvt_pk_bf16_f32 v58, v58, v58")
        a("v_lshlrev_b32 v58, 16, v58")
        for p in range(4):
            r = 8 + 4*j + p
            a(f"v_lshlrev_b32 v59, 16, v{r}")
            a(f"v_fmac_f32 v{60+2*p}, v58, v59")
            a(f"v_and_b32 v59, s22, v{r}")
            a(f"v_fmac_f32 v{61+2*p}, v58, v59")
    a("v_lshlrev_b32 v5, 7, v2")
    a("v_lshlrev_b32 v6, 5, v1")
    a("v_add_u32 v5, v5, v6")
    a("ds_write_b128 v5, v[60:63]")
    a("ds_write_b128 v5, v[64:67] offset:16")
    a("s_waitcnt lgkmcnt(0)")
    a("s_barrier")
    a("v_and_b32 v1, 31, v0")
    a("v_lshrrev_b32 v2, 5, v0")
    a("v_lshlrev_b32 v3, 10, v2")
    a("v_lshlrev_b32 v4, 2, v1")
    a("v_add_u32 v3, v3, v4")
    for i in range(8):
        a(f"ds_read_b32 v{8+i}, v3 offset:{128*i}")
    a("s_waitcnt lgkmcnt(0)")
    for i in range(1, 8):
        a(f"v_add_f32 v8, v8, v{8+i}")
    a("v_lshlrev_b32 v5, 2, v0")
    a("ds_write_b32 v5, v8 offset:8192")
    a("s_waitcnt lgkmcnt(0)")
    a("s_barrier")
    for i in range(8):
        a(f"ds_read_b32 v{8+i}, v4 offset:{8192+128*i}")
    a("s_waitcnt lgkmcnt(0)")
    for i in range(1, 8):
        a(f"v_add_f32 v8, v8, v{8+i}")
    a("v_cvt_pk_bf16_f32 v8, v8, v8")
    a("v_lshlrev_b32 v8, 16, v8")
    a("s_lshl_b32 s3, s2, 7")
    a("v_add_u32 v4, s3, v4")
    a("v_cmp_gt_u32 vcc, 32, v0")
    a("s_and_saveexec_b64 s[28:29], vcc")
    a("s_cbranch_execz prep_done")
    a("buffer_store_dword v8, v4, s[24:27], 0 offen")
    a.label("prep_done")
    a("s_endpgm")
    kdesc(a, nm, 100, 100)


def gen_conv(a):
    nm = "conv_kernel"
    kstart(a, nm)
    a("s_cmp_ge_u32 s2, 640")
    a("s_cbranch_scc1 conv_done")
    HE, HO, KH, MX, PART = 0, 4160, 8320, 12928, 12944
    st = Stamper(a, nm, 136)
    st("start")
    a(f"s_load_dwordx2 s[4:5], s[0:1], {KA['ws']}")
    a(f"s_load_dwordx2 s[6:7], s[0:1], {KA['Dskip']}")
    a("v_and_b32 v1, 63, v0")
    a("v_lshrrev_b32 v2, 6, v0")
    a("v_and_b32 v3, 15, v1")
    a("v_lshrrev_b32 v4, 4, v1")
    a("v_lshlrev_b32 v5, 4, v0")
    a(f"s_mul_i32 s3, s2, {PITCH}")
    a("s_lshl_b32 s20, s2, 12")
    a("s_lshl_b32 s36, s2, 2")
    a("s_and_b32 s37, s2, 0xfffffffe")
    a("s_lshl_b32 s37, s37, 1")
    a("s_waitcnt lgkmcnt(0)")
    a("s_add_u32 s38, s4, s36")
    a("s_addc_u32 s39, s5, 0")
    a(f"s_load_dword s40, s[38:39], {WS_MOD}")
    a(f"s_load_dword s41, s[38:39], {WS_MOD+640*4}")
    a(f"s_load_dword s42, s[38:39], {WS_MOD+2*640*4}")
    a(f"s_load_dword s43, s[38:39], {WS_KSC}")
    a("s_add_u32 s38, s6, s37")
    a("s_addc_u32 s39, s7, 0")
    a("s_load_dword s44, s[38:39], 0")
    for sd, off in ((8, WS_XNT), (12, WS_XT), (16, WS_X1T)):
        a(f"s_add_u32 s{sd}, s3, {off}")
        a(f"s_add_u32 s{sd}, s4, s{sd}")
        a(f"s_addc_u32 s{sd+1}, s5, 0")
        a(f"s_mov_b32 s{sd+2}, 4096")
        a(f"s_mov_b32 s{sd+3}, 0x00020000")
    a(f"s_add_u32 s20, s20, {WS_KR}")
    a("s_add_u32 s20, s4, s20")
    a("s_addc_u32 s21, s5, 0")
    a("s_mov_b32 s22, 4096")
    a("s_mov_b32 s23, 0x00020000")
    a("buffer_load_dwordx4 v[8:11], v5, s[8:11], 0 offen")
    a("buffer_load_dword v12, v5, s[8:11], 0 offen offset:16")
    a("buffer_load_dwordx4 v[16:19], v5, s[20:23], 0 offen")
    a("buffer_load_dwordx4 v[20:23], v5, s[12:15], 0 offen")
    for r in range(28, 32):
        a(f"v_mov_b32 v{r}, 0")
    a("v_cmp_gt_u32 vcc, 32, v0")
    a("s_and_saveexec_b64 s[32:33], vcc")
    a(f"ds_write_b128 v5, v[28:31] offset:{KH+4096}")
    a("s_mov_b64 exec, s[32:33]")
    a("v_cmp_gt_u32 vcc, 2, v0")
    a("s_and_saveexec_b64 s[32:33], vcc")
    a(f"ds_write_b128 v5, v[28:31] offset:{HE}")
    a(f"ds_write_b128 v5, v[28:31] offset:{HO}")
    a("s_mov_b64 exec, s[32:33]")
    a("s_mov_b32 s34, 0xffff0000")
    a("v_lshlrev_b32 v28, 6, v2")
    a("v_lshlrev_b32 v29, 1, v3")
    a("v_add3_u32 v28, v28, v29, 50")
    a("v_lshlrev_b32 v29, 4, v4")
    a("v_sub_u32 v28, v28, v29")
    a(f"v_add_u32 v30, {HO-2}, v28")
    a("v_and_b32 v31, 1, v3")
    a("v_cmp_eq_u32 vcc, 1, v31")
    a("s_nop 1")
    a("v_cndmask_b32 v24, v30, v28, vcc")
    a("v_add_u32 v25, 1024, v24")
    a("v_add_u32 v26, 2048, v24")
    a("v_add_u32 v27, 3072, v24")
    a("v_lshlrev_b32 v30, 6, v2")
    a(f"v_add_u32 v30, {KH+528}, v30")
    a("v_lshlrev_b32 v31, 5, v3")
    a("v_sub_u32 v30, v30, v31")
    a("v_sub_u32 v30, v30, v29")
    for r in range(32, 64):
        a(f"v_mov_b32 v{r}, 0")
    st("issued")
    a("s_waitcnt lgkmcnt(0)")
    a("v_mov_b32 v6, s41")
    a("v_add_f32 v6, 1.0, v6")
    a("v_cvt_pk_bf16_f32 v6, v6, v6")
    a("v_lshlrev_b32 v6, 16, v6")
    a("s_and_b32 s45, s2, 1")
    a("s_lshl_b32 s46, s44, 16")
    a("s_and_b32 s44, s44, 0xffff0000")
    a("s_cmp_eq_u32 s45, 1")
    a("s_cselect_b32 s44, s44, s46")
    a("s_waitcnt vmcnt(2)")
    st("xn arrived")
    a("v_mov_b32 v7, 0")
    for p in range(5):
        r = 8 + p
        a(f"v_lshlrev_b32 v28, 16, v{r}")
        a(f"v_and_b32 v29, s34, v{r}")
        a("v_mul_f32 v28, v28, v6")
        a("v_mul_f32 v29, v29, v6")
        a("v_cvt_pk_bf16_f32 v28, v28, v29")
        a("v_and_b32 v29, s34, v28")
        a("v_lshlrev_b32 v28, 16, v28")
        a("v_add_f32 v28, s40, v28")
        a("v_add_f32 v29, s40, v29")
        a(f"v_cvt_pk_bf16_f32 v{r}, v28, v29")
        a(f"v_lshlrev_b32 v{64+2*p}, 16, v{r}")
        a(f"v_and_b32 v{65+2*p}, s34, v{r}")
        if p < 4:
            a(f"v_max3_f32 v7, v7, |v{64+2*p}|, |v{65+2*p}|")
    wave_max(a, 7, 28)
    a("v_lshlrev_b32 v28, 2, v2")
    a(f"ds_write_b32 v28, v7 offset:{MX}")
    a("s_waitcnt vmcnt(1)")
    a(f"ds_write_b128 v5, v[16:19] offset:{KH}")
    a("s_waitcnt lgkmcnt(0)")
    a("s_barrier")
    a("v_mov_b32 v28, 0")
    a(f"ds_read_b128 v[16:19], v28 offset:{MX}")
    a("s_waitcnt lgkmcnt(0)")
    a("v_max3_f32 v16, v16, v17, v18")
    a("v_max_f32 v16, v16, v19")
    pow2_scale(a, 16, 17, 7)
    a("v_mul_f32 v7, s43, v7")
    for e in range(10):
        a(f"v_mul_f32 v{64+e}, v{64+e}, v17")
    for p in range(4):
        a(f"v_cvt_pkrtz_f16_f32 v{16+p}, v{64+2*p}, v{65+2*p}")
        a(f"v_cvt_pkrtz_f16_f32 v{76+p}, v{65+2*p}, v{66+2*p}")
    a(f"ds_write_b128 v5, v[16:19] offset:{HE+32}")
    a(f"ds_write_b128 v5, v[76:79] offset:{HO+32}")
    a("v_lshlrev_b32 v28, 16, v16")
    a("v_cmp_eq_u32 vcc, 0, v0")
    a("s_and_saveexec_b64 s[32:33], vcc")
    a(f"ds_write_b32 v5, v28 offset:{HO+28}")
    a("s_mov_b64 exec, s[32:33]")
    a("s_waitcnt lgkmcnt(0)")
    st("pre-barrier")
    a("s_barrier")
    st("post-barrier")
    for aa in range(16):
        b = 24 + aa // 4
        o = 64 * (aa % 4)
        a(f"ds_read2_b32 v[{64+4*aa}:{65+4*aa}], v{b} offset0:{o} offset1:{o+1}")
        a(f"ds_read2_b32 v[{66+4*aa}:{67+4*aa}], v{b} offset0:{o+2} offset1:{o+3}")
    BUF = [16, 128, 132]
    rhos = list(range(-1, 15))
    def ldB(i):
        rho = rhos[i]
        h = BUF[i % 3]
        a(f"ds_read_b128 v[{h}:{h+3}], v30 offset:{256*(14-rho)}")
    st("A frags")
    ldB(0)
    ldB(1)
    for i, rho in enumerate(rhos):
        if i + 2 < len(rhos):
            ldB(i + 2)
            a("s_waitcnt lgkmcnt(2)")
        elif i + 1 < len(rhos):
            a("s_waitcnt lgkmcnt(1)")
        else:
            a("s_waitcnt lgkmcnt(0)")
        h = BUF[i % 3]
        cmin = max(0, (rho + 1) // 2)
        for c in range(cmin, 8):
            aa = 2*c - rho
            assert 0 <= aa <= 15
            A = 64 + 4*aa
            acc = 32 + 4*c
            a(f"v_mfma_f32_16x16x32_f16 v[{acc}:{acc+3}], v[{A}:{A+3}], v[{h}:{h+3}], v[{acc}:{acc+3}]")
    a("s_nop 15")
    st("mfma done")
    a("v_lshlrev_b32 v28, 13, v2")
    a("v_lshlrev_b32 v29, 6, v3")
    a("v_lshlrev_b32 v30, 4, v4")
    a("v_add3_u32 v28, v28, v29, v30")
    for c in range(8):
        a(f"ds_write_b128 v28, v[{32+4*c}:{35+4*c}] offset:{PART+1024*c}")
    a("s_waitcnt lgkmcnt(0)")
    a("s_barrier")
    st("barrier2")
    a("v_lshlrev_b32 v28, 5, v0")
    for w in range(4):
        a(f"ds_read_b128 v[{32+8*w}:{35+8*w}], v28 offset:{PART+8192*w}")
        a(f"ds_read_b128 v[{36+8*w}:{39+8*w}], v28 offset:{PART+8192*w+16}")
    a("s_waitcnt lgkmcnt(0)")
    for e in range(8):
        a(f"v_add_f32 v{32+e}, v{32+e}, v{40+e}")
        a(f"v_add_f32 v{48+e}, v{48+e}, v{56+e}")
        a(f"v_add_f32 v{32+e}, v{32+e}, v{48+e}")
        a(f"v_mul_f32 v{32+e}, v{32+e}, v7")
    a("s_waitcnt vmcnt(0)")
    for p in range(4):
        y0, y1 = 32 + 2*p, 33 + 2*p
        a(f"v_cvt_pk_bf16_f32 v40, v{y0}, v{y1}")
        a("v_lshlrev_b32 v41, 16, v40")
        a("v_and_b32 v42, s34, v40")
        a(f"v_lshlrev_b32 v43, 16, v{8+p}")
        a(f"v_and_b32 v44, s34, v{8+p}")
        a("v_mul_f32 v43, s44, v43")
        a("v_mul_f32 v44, s44, v44")
        a("v_cvt_pk_bf16_f32 v43, v43, v44")
        a("v_and_b32 v44, s34, v43")
        a("v_lshlrev_b32 v43, 16, v43")
        a("v_add_f32 v41, v41, v43")
        a("v_add_f32 v42, v42, v44")
        a("v_cvt_pk_bf16_f32 v41, v41, v42")
        a("v_and_b32 v42, s34, v41")
        a("v_lshlrev_b32 v41, 16, v41")
        a("v_mul_f32 v41, s42, v41")
        a("v_mul_f32 v42, s42, v42")
        a("v_cvt_pk_bf16_f32 v41, v41, v42")
        a("v_and_b32 v42, s34, v41")
        a("v_lshlrev_b32 v41, 16, v41")
        a(f"v_lshlrev_b32 v43, 16, v{20+p}")
        a(f"v_and_b32 v44, s34, v{20+p}")
        a("v_add_f32 v41, v41, v43")
        a("v_add_f32 v42, v42, v44")
        a(f"v_cvt_pk_bf16_f32 v{48+p}, v41, v42")
    a("buffer_store_dwordx4 v[48:51], v5, s[16:19], 0 offen")
    st("end")
    st.flush()
    a.label("conv_done")
    a("s_endpgm")
    kdesc(a, nm, 140, 100)

def allreduce64(a, regs, tmp):
    for ctl in ("quad_perm:[1,0,3,2]", "quad_perm:[2,3,0,1]", "row_half_mirror", "row_mirror"):
        a("s_nop 1")
        for v in regs:
            a(f"v_add_f32_dpp v{v}, v{v}, v{v} {ctl} row_mask:0xf bank_mask:0xf")
    for swap in ("v_permlane16_swap_b32", "v_permlane32_swap_b32"):
        for v, t in zip(regs, tmp):
            a(f"v_mov_b32 v{t}, v{v}")
        a("s_nop 1")
        for v, t in zip(regs, tmp):
            a(f"{swap} v{v}, v{t}")
        a("s_nop 1")
        for v, t in zip(regs, tmp):
            a(f"v_add_f32 v{v}, v{v}, v{t}")

def gen_ln2(a):
    nm = "ln2_kernel"
    kstart(a, nm)
    a("s_cmp_ge_u32 s2, 128")
    a("s_cbranch_scc1 ln2_done")
    a(f"s_load_dwordx2 s[4:5], s[0:1], {KA['ws']}")
    a("s_and_b32 s3, s2, 7")
    a("s_lshl_b32 s3, s3, 4")
    a("s_lshr_b32 s6, s2, 3")
    a("s_add_u32 s3, s3, s6")
    a("s_lshl_b32 s3, s3, 5")
    a("v_and_b32 v1, 63, v0")
    a("v_lshrrev_b32 v2, 6, v0")
    a(f"v_mul_u32_u24 v3, {PITCH}, v1")
    a("v_lshlrev_b32 v4, 3, v2")
    a("v_add3_u32 v3, v3, v4, s3")
    a("v_lshlrev_b32 v5, 2, v1")
    a("s_waitcnt lgkmcnt(0)")
    srd(a, 8, 4, SZ_T, WS_X1T)
    srd(a, 12, 4, SZ_T, WS_H2T)
    srd(a, 16, 4, 3840*4, WS_MOD)
    a("s_mov_b32 s20, 0")
    for j in range(10):
        a(f"buffer_load_dwordx2 v[{8+2*j}:{9+2*j}], v3, s[8:11], s20 offen")
        a(f"s_add_u32 s20, s20, {64*PITCH}")
    a(f"s_movk_i32 s21, {3*640*4}")
    a(f"s_movk_i32 s22, {4*640*4}")
    for j in range(10):
        a(f"buffer_load_dword v{28+j}, v5, s[16:19], s21 offen offset:{256*j}")
        a(f"buffer_load_dword v{38+j}, v5, s[16:19], s22 offen offset:{256*j}")
    a("s_mov_b32 s23, 0xffff0000")
    S = [48, 49, 50, 51]
    for v in S:
        a(f"v_mov_b32 v{v}, 0")
    a("s_waitcnt vmcnt(20)")
    def unpack(j, base):
        a(f"v_lshlrev_b32 v{base}, 16, v{8+2*j}")
        a(f"v_and_b32 v{base+1}, s23, v{8+2*j}")
        a(f"v_lshlrev_b32 v{base+2}, 16, v{9+2*j}")
        a(f"v_and_b32 v{base+3}, s23, v{9+2*j}")
    for j in range(10):
        unpack(j, 56)
        for i in range(4):
            a(f"v_add_f32 v{S[i]}, v{S[i]}, v{56+i}")
    allreduce64(a, S, [52, 53, 54, 55])
    a(f"s_mov_b32 s24, {0x3acccccd}")
    for v in S:
        a(f"v_mul_f32 v{v}, s24, v{v}")
    V = [60, 61, 62, 63]
    for v in V:
        a(f"v_mov_b32 v{v}, 0")
    for j in range(10):
        unpack(j, 56)
        for i in range(4):
            a(f"v_sub_f32 v{56+i}, v{56+i}, v{S[i]}")
            a(f"v_fmac_f32 v{V[i]}, v{56+i}, v{56+i}")
    allreduce64(a, V, [52, 53, 54, 55])
    RC = [64, 65, 66, 67]
    for i in range(4):
        a(f"v_mul_f32 v{V[i]}, s24, v{V[i]}")
        a(f"v_cvt_pk_bf16_f32 v52, v{S[i]}, v{V[i]}")
        a(f"v_lshlrev_b32 v{S[i]}, 16, v52")
        a(f"v_and_b32 v{V[i]}, s23, v52")
        a(f"v_add_f32 v{V[i]}, {0x3727c5ac}, v{V[i]}")
        a(f"v_cvt_pk_bf16_f32 v{V[i]}, v{V[i]}, v{V[i]}")
        a(f"v_lshlrev_b32 v{V[i]}, 16, v{V[i]}")
        a(f"v_sqrt_f32 v{V[i]}, v{V[i]}")
        a("s_nop 0")
        a(f"v_cvt_pk_bf16_f32 v{V[i]}, v{V[i]}, v{V[i]}")
        a(f"v_lshlrev_b32 v{V[i]}, 16, v{V[i]}")
        a(f"v_rcp_f32 v{RC[i]}, v{V[i]}")
    a("s_waitcnt vmcnt(0)")
    a("s_mov_b32 s20, 0")
    for j in range(10):
        a(f"v_add_f32 v{38+j}, 1.0, v{38+j}")
        a(f"v_cvt_pk_bf16_f32 v{38+j}, v{38+j}, v{38+j}")
        a(f"v_lshlrev_b32 v{38+j}, 16, v{38+j}")
        unpack(j, 56)
        for i in range(4):
            a(f"v_sub_f32 v{56+i}, v{56+i}, v{S[i]}")
        for h in range(2):
            a(f"v_cvt_pk_bf16_f32 v52, v{56+2*h}, v{57+2*h}")
            a(f"v_lshlrev_b32 v{56+2*h}, 16, v52")
            a(f"v_and_b32 v{57+2*h}, s23, v52")
        for i in range(4):
            a(f"v_mul_f32 v{68+i}, v{56+i}, v{RC[i]}")
            a(f"v_fma_f32 v{56+i}, -v{68+i}, v{V[i]}, v{56+i}")
            a(f"v_fmac_f32 v{68+i}, v{56+i}, v{RC[i]}")
        for h in range(2):
            a(f"v_cvt_pk_bf16_f32 v52, v{68+2*h}, v{69+2*h}")
            a(f"v_lshlrev_b32 v{68+2*h}, 16, v52")
            a(f"v_and_b32 v{69+2*h}, s23, v52")
        for i in range(4):
            a(f"v_mul_f32 v{68+i}, v{68+i}, v{38+j}")
        for h in range(2):
            a(f"v_cvt_pk_bf16_f32 v52, v{68+2*h}, v{69+2*h}")
            a(f"v_lshlrev_b32 v{68+2*h}, 16, v52")
            a(f"v_and_b32 v{69+2*h}, s23, v52")
        for i in range(4):
            a(f"v_add_f32 v{68+i}, v{68+i}, v{28+j}")
        a(f"v_cvt_pk_bf16_f32 v{8+2*j}, v68, v69")
        a(f"v_cvt_pk_bf16_f32 v{9+2*j}, v70, v71")
        a(f"buffer_store_dwordx2 v[{8+2*j}:{9+2*j}], v3, s[12:15], s20 offen")
        a(f"s_add_u32 s20, s20, {64*PITCH}")
    a.label("ln2_done")
    a("s_endpgm")
    kdesc(a, nm, 72, 32)

G1_NT = 14
def gen_gemm1(a):
    nm = "gemm1_kernel"
    kstart(a, nm)
    a(f"s_cmp_ge_u32 s2, {16*G1_NT}")
    a("s_cbranch_scc1 g1_done")
    stp = Stamper(a, nm, 160)
    stp("start")
    a(f"s_load_dwordx2 s[4:5], s[0:1], {KA['ws']}")
    a(f"s_load_dwordx2 s[6:7], s[0:1], {KA['w1']}")
    a("s_and_b32 s20, s2, 7")
    a("s_lshr_b32 s21, s2, 3")
    a("s_and_b32 s22, s21, 1")
    a("s_lshl_b32 s20, s20, 1")
    a("s_add_u32 s20, s20, s22")
    a("s_lshr_b32 s21, s21, 1")
    a("s_lshl_b32 s24, s20, 8")
    a("s_lshl_b32 s25, s21, 8")
    a("v_and_b32 v1, 63, v0")
    a("v_lshrrev_b32 v2, 6, v0")
    a("s_nop 0")
    a("v_readfirstlane_b32 s26, v2")
    a("v_lshrrev_b32 v3, 4, v1")
    a("v_and_b32 v4, 15, v1")
    a("v_lshlrev_b32 v5, 4, v2")
    a("v_add_u32 v5, v5, v3")
    a("v_lshlrev_b32 v6, 1, v3")
    a("v_xor_b32 v7, v4, v6")
    a("v_add_u32 v6, 8, v6")
    a("v_xor_b32 v6, v4, v6")
    a("v_lshlrev_b32 v7, 4, v7")
    a("v_lshlrev_b32 v6, 4, v6")
    a(f"v_mul_u32_u24 v28, {PITCH}, v5")
    a("v_add_u32 v24, v28, v7")
    a("v_add_u32 v25, v28, v6")
    a("s_movk_i32 s27, 3456")
    a("v_mul_lo_u32 v28, v5, s27")
    a("v_add_u32 v26, v28, v7")
    a("v_add_u32 v27, v28, v6")
    a("v_lshrrev_b32 v5, 2, v4")
    a("v_lshlrev_b32 v6, 2, v3")
    a("v_add_u32 v5, v5, v6")
    a("v_and_b32 v6, 7, v5")
    a("v_and_b32 v7, 3, v1")
    a("v_lshlrev_b32 v7, 3, v7")
    a("v_lshlrev_b32 v5, 8, v5")
    a("v_add_u32 v5, v5, v7")
    a("v_lshrrev_b32 v28, 1, v2")
    a("v_and_b32 v29, 1, v2")
    a("v_lshlrev_b32 v28, 2, v28")
    a("v_lshlrev_b32 v29, 2, v29")
    for i in range(4):
        a(f"v_add_u32 v30, {i}, v28")
        a("v_xor_b32 v30, v30, v6")
        a("v_lshlrev_b32 v30, 5, v30")
        a(f"v_add_u32 v{8+i}, v30, v5")
        a(f"v_add_u32 v{12+i}, 0x10000, v{8+i}")
        a(f"v_add_u32 v30, {i}, v29")
        a("v_xor_b32 v30, v30, v6")
        a("v_lshlrev_b32 v30, 5, v30")
        a(f"v_add_u32 v{16+i}, v30, v5")
        a(f"v_add_u32 v{20+i}, 0x10000, v{16+i}")
    for r in range(64, 128):
        a(f"v_mov_b32 v{r}, 0")
    a("s_waitcnt lgkmcnt(0)")
    srd(a, 8, 4, SZ_T, WS_H2T)
    srd(a, 12, 6, 640*1728*2)
    srd(a, 16, 4, SZ_H1T, WS_H1T)
    a("s_lshl_b32 s28, s26, 12")
    def issue(st):
        slot = st & 3
        k0 = 64*st
        for i in range(4):
            a(f"s_add_u32 s29, s28, {slot*32768 + i*1024}")
            a("s_mov_b32 m0, s29")
            a(f"s_add_u32 s30, s24, {(k0+4*i)*PITCH}")
            a(f"buffer_load_dwordx4 v{24+(i&1)}, s[8:11], s30 offen lds")
        for i in range(4):
            a(f"s_add_u32 s29, s28, {slot*32768 + 16384 + i*1024}")
            a("s_mov_b32 m0, s29")
            a(f"s_add_u32 s30, s25, {(k0+4*i)*3456}")
            a(f"buffer_load_dwordx4 v{26+(i&1)}, s[12:15], s30 offen lds")
    NIT = 10
    for st in range(3):
        issue(st)
    FR = [32, 128]
    def rd(st, ks, buf):
        slot = st & 3
        ab = 8 if slot < 2 else 12
        bb = 16 if slot < 2 else 20
        so = (slot & 1) * 32768
        f = FR[buf]
        for i in range(4):
            for h in range(2):
                a(f"ds_read_b64_tr_b16 v[{f+4*i+2*h}:{f+4*i+2*h+1}], v{ab+i} offset:{so + (32*ks+16*h)*256}")
        for i in range(4):
            for h in range(2):
                a(f"ds_read_b64_tr_b16 v[{f+16+4*i+2*h}:{f+16+4*i+2*h+1}], v{bb+i} offset:{so + 16384 + (32*ks+16*h)*256}")
    def mm(buf):
        f = FR[buf]
        for i in range(4):
            for j in range(4):
                acc = 64 + 4*(4*i + j)
                a(f"v_mfma_f32_16x16x32_bf16 v[{acc}:{acc+3}], v[{f+4*i}:{f+4*i+3}], v[{f+16+4*j}:{f+16+4*j+3}], v[{acc}:{acc+3}]")
    for it in range(NIT):
        ahead = min(2, NIT - 1 - it)
        a(f"s_waitcnt vmcnt({8*ahead})")
        stp("w")
        a("s_barrier")
        stp("b")
        if it + 3 < NIT:
            issue(it + 3)
        rd(it, 0, 0)
        rd(it, 1, 1)
        a("s_waitcnt lgkmcnt(15)")
        mm(0)
        a("s_waitcnt lgkmcnt(0)")
        mm(1)
    a("s_nop 15")
    a("v_lshrrev_b32 v28, 1, v2")
    a("v_and_b32 v29, 1, v2")
    a("v_lshlrev_b32 v29, 6, v29")
    a("v_add_u32 v29, v29, v4")
    a("s_lshl_b32 s29, s21, 7")
    a("v_add_u32 v29, s29, v29")
    a(f"v_mul_u32_u24 v29, {PITCH}, v29")
    a("v_lshlrev_b32 v28, 7, v28")
    a("v_lshlrev_b32 v30, 3, v3")
    a("v_add3_u32 v29, v29, v28, v30")
    a("v_add_u32 v29, s24, v29")
    for j in range(4):
        a(f"s_mov_b32 s30, {16*PITCH*j}")
        for i in range(4):
            acc = 64 + 4*(4*i + j)
            for r in range(4):
                a(f"v_max_f32 v{acc+r}, 0, v{acc+r}")
            a(f"v_cvt_pk_bf16_f32 v{acc}, v{acc}, v{acc+1}")
            a(f"v_cvt_pk_bf16_f32 v{acc+1}, v{acc+2}, v{acc+3}")
            a(f"buffer_store_dwordx2 v[{acc}:{acc+1}], v29, s[16:19], s30 offen offset:{32*i}")
    stp("end")
    stp.flush()
    a.label("g1_done")
    a("s_endpgm")
    kdesc(a, nm, 164, 100)

def gen_gemm2(a):
    nm = "gemm2_kernel"
    kstart(a, nm)
    a("s_cmp_ge_u32 s2, 256")
    a("s_cbranch_scc1 g2_done")
    stp = Stamper(a, nm, 88)
    stp("start")
    a(f"s_load_dwordx2 s[4:5], s[0:1], {KA['ws']}")
    a(f"s_load_dwordx2 s[6:7], s[0:1], {KA['w2']}")
    a(f"s_load_dwordx2 s[32:33], s[0:1], {KA['out']}")
    a("s_and_b32 s20, s2, 7")
    a("s_lshr_b32 s21, s2, 3")
    a("s_and_b32 s22, s21, 3")
    a("s_lshl_b32 s20, s20, 2")
    a("s_add_u32 s20, s20, s22")
    a("s_lshr_b32 s21, s21, 2")
    a("s_lshl_b32 s24, s20, 7")
    a("s_mul_i32 s25, s21, 160")
    a("v_and_b32 v1, 63, v0")
    a("v_lshrrev_b32 v2, 6, v0")
    a("s_nop 0")
    a("v_readfirstlane_b32 s26, v2")
    a("v_lshrrev_b32 v3, 4, v1")
    a("v_and_b32 v4, 15, v1")
    ST = 18432
    NS = 6
    a("s_cmp_lt_u32 s26, 2")
    a("s_cbranch_scc0 g2_setupH")
    a("s_mul_i32 s27, s26, 320")
    a("s_movk_i32 s28, 6554")
    a("s_movk_i32 s29, 1280")
    for i in range(5):
        a(f"v_add_u32 v5, {64*i}, v1")
        a("v_add_u32 v5, s27, v5")
        a("v_mul_lo_u32 v6, v5, s28")
        a("v_lshrrev_b32 v6, 16, v6")
        a("v_mul_u32_u24 v7, 10, v6")
        a("v_sub_u32 v7, v5, v7")
        a("v_mul_lo_u32 v6, v6, s29")
        a("v_lshlrev_b32 v7, 4, v7")
        a(f"v_add_u32 v{8+i}, v6, v7")
    a("s_mul_i32 s28, s26, 5120")
    a("s_branch g2_setup_done")
    a.label("g2_setupH")
    a("s_sub_u32 s27, s26, 2")
    for r in (9, 10, 11, 12):
        a(f"v_mov_b32 v{r}, 0")
    a("v_lshrrev_b32 v5, 3, v1")
    a("v_and_b32 v6, 7, v1")
    a("v_and_b32 v7, 3, v3")
    a("v_lshlrev_b32 v7, 1, v7")
    a("v_xor_b32 v6, v6, v7")
    a("v_lshlrev_b32 v6, 4, v6")
    a("s_lshl_b32 s28, s27, 5")
    a("v_add_u32 v5, s28, v5")
    a(f"v_mul_u32_u24 v5, {PITCH}, v5")
    a("v_add_u32 v8, v5, v6")
    a("s_lshl_b32 s28, s27, 12")
    a("s_add_u32 s28, s28, 10240")
    a.label("g2_setup_done")
    a("v_lshrrev_b32 v5, 2, v4")
    a("v_lshlrev_b32 v6, 2, v3")
    a("v_add_u32 v5, v5, v6")
    a("v_and_b32 v7, 3, v1")
    a("v_lshlrev_b32 v7, 3, v7")
    a("v_mul_u32_u24 v14, 160, v5")
    a("v_add_u32 v14, v14, v7")
    a(f"v_add_u32 v15, {3*ST}, v14")
    a("v_lshrrev_b32 v6, 1, v5")
    a("v_and_b32 v6, 3, v6")
    a("v_xor_b32 v6, v6, v2")
    a("v_lshlrev_b32 v6, 5, v6")
    a("v_lshlrev_b32 v16, 7, v5")
    a("v_add3_u32 v16, v16, v6, v7")
    a(f"v_add_u32 v17, {3*ST}, v16")
    for r in range(20, 40):
        a(f"v_mov_b32 v{r}, 0")
    a("s_waitcnt lgkmcnt(0)")
    srd(a, 8, 6, 1728*640*2)
    srd(a, 12, 4, SZ_H1T, WS_H1T)
    srd(a, 16, 4, SZ_T, WS_X1T)
    srd(a, 36, 4, 3840*4, WS_MOD)
    srd(a, 40, 32, 2048*640*2)
    NIT = 27
    uid = [0]
    def issue(st):
        slot = st % NS
        k0 = 64*st
        u = uid[0]; uid[0] += 1
        a("s_cmp_lt_u32 s26, 2")
        a(f"s_cbranch_scc0 g2_iH{u}")
        for i in range(5):
            a(f"s_add_u32 s29, s28, {slot*ST + i*1024}")
            a("s_mov_b32 m0, s29")
            a(f"s_add_u32 s30, s25, {k0*1280}")
            a(f"buffer_load_dwordx4 v{8+i}, s[8:11], s30 offen lds")
        a(f"s_branch g2_iD{u}")
        a.label(f"g2_iH{u}")
        for i in range(4):
            a(f"s_add_u32 s29, s28, {slot*ST + i*1024}")
            a("s_mov_b32 m0, s29")
            a(f"s_add_u32 s30, s24, {(k0+8*i)*PITCH}")
            a(f"buffer_load_dwordx4 v8, s[12:15], s30 offen lds")
        a.label(f"g2_iD{u}")
    def wait(ahead):
        u = uid[0]; uid[0] += 1
        a("s_cmp_lt_u32 s26, 2")
        a(f"s_cbranch_scc0 g2_wH{u}")
        a(f"s_waitcnt vmcnt({5*ahead})")
        a(f"s_branch g2_wD{u}")
        a.label(f"g2_wH{u}")
        a(f"s_waitcnt vmcnt({4*ahead})")
        a.label(f"g2_wD{u}")
    for st in range(NS - 1):
        issue(st)
    FR = [40, 64]
    def rd(st, ks, buf):
        slot = st % NS
        wb = 14 if slot < 3 else 15
        hb = 16 if slot < 3 else 17
        so = (slot % 3) * ST
        f = FR[buf]
        for h in range(2):
            a(f"ds_read_b64_tr_b16 v[{f+20+2*h}:{f+21+2*h}], v{hb} offset:{so + 10240 + (32*ks+16*h)*128}")
        for i in range(5):
            for h in range(2):
                a(f"ds_read_b64_tr_b16 v[{f+4*i+2*h}:{f+4*i+2*h+1}], v{wb} offset:{so + (32*ks+16*h)*160 + 32*i}")
    def mm(buf):
        f = FR[buf]
        for i in range(5):
            acc = 20 + 4*i
            a(f"v_mfma_f32_16x16x32_bf16 v[{acc}:{acc+3}], v[{f+4*i}:{f+4*i+3}], v[{f+20}:{f+23}], v[{acc}:{acc+3}]")
    for it in range(NIT):
        ahead = min(NS - 2, NIT - 1 - it)
        wait(ahead)
        stp("w")
        a("s_barrier")
        stp("b")
        if it + NS - 1 < NIT:
            issue(it + NS - 1)
        rd(it, 0, 0)
        rd(it, 1, 1)
        a("s_waitcnt lgkmcnt(12)")
        mm(0)
        a("s_waitcnt lgkmcnt(0)")
        mm(1)
    a("v_lshlrev_b32 v5, 4, v2")
    a("v_add_u32 v5, v5, v4")
    a("v_lshlrev_b32 v6, 1, v5")
    a("v_add_u32 v6, s24, v6")
    a("s_mul_i32 s27, s21, 80")
    a("v_lshlrev_b32 v7, 2, v3")
    a("v_add_u32 v7, s27, v7")
    a(f"v_mul_u32_u24 v8, {PITCH}, v7")
    a("v_add_u32 v8, v8, v6")
    a("v_lshlrev_b32 v9, 2, v7")
    a(f"s_movk_i32 s29, {5*640*4}")
    for i in range(5):
        a(f"buffer_load_dwordx4 v[{40+4*i}:{43+4*i}], v9, s[36:39], s29 offen offset:{64*i}")
    for i in range(5):
        for r in range(4):
            a(f"s_mov_b32 s30, {(16*i+r)*PITCH}")
            a(f"buffer_load_ushort v{60+4*i+r}, v8, s[16:19], s30 offen")
    a("s_lshl_b32 s30, s20, 6")
    a("v_add_u32 v10, s30, v5")
    a("s_movk_i32 s31, 1280")
    a("v_mul_lo_u32 v10, v10, s31")
    a("v_lshlrev_b32 v11, 1, v7")
    a("v_add_u32 v10, v10, v11")
    a("s_mov_b32 s31, 0xffff0000")
    a("s_waitcnt vmcnt(0)")
    for i in range(5):
        acc = 20 + 4*i
        for hh in range(2):
            r0, r1 = acc + 2*hh, acc + 2*hh + 1
            a(f"v_cvt_pk_bf16_f32 v12, v{r0}, v{r1}")
            a("v_lshlrev_b32 v13, 16, v12")
            a("v_and_b32 v12, s31, v12")
            a(f"v_mul_f32 v13, v13, v{40+4*i+2*hh}")
            a(f"v_mul_f32 v12, v12, v{41+4*i+2*hh}")
            a("v_cvt_pk_bf16_f32 v12, v13, v12")
            a("v_lshlrev_b32 v13, 16, v12")
            a("v_and_b32 v12, s31, v12")
            a(f"v_lshlrev_b32 v18, 16, v{60+4*i+2*hh}")
            a(f"v_lshlrev_b32 v19, 16, v{61+4*i+2*hh}")
            a("v_add_f32 v13, v13, v18")
            a("v_add_f32 v12, v12, v19")
            a(f"v_cvt_pk_bf16_f32 v{acc+hh}, v13, v12")
        a(f"buffer_store_dwordx2 v[{acc}:{acc+1}], v10, s[40:43], 0 offen offset:{32*i}")
    stp("end")
    stp.flush()
    a.label("g2_done")
    a("s_endpgm")
    kdesc(a, nm, 92, 100)

def main():
    a = Asm()
    hdr = open(f"cdna_kernels/{NAME}.s.ref").read().split("\n")
    for ln in hdr:
        if ln.startswith("; @launch") or ln.startswith("; Override") or ln.startswith("; grid="):
            continue
        if not ln.startswith(";"):
            break
        a.raw(ln)
    a.raw(f"; @launch kernel=prep_kernel grid=({N_KGEN+N_LN1+N_MOD},1,1) block=(256,1,1) lds=22560")
    a.raw("; @launch kernel=conv_kernel grid=(640,1,1) block=(256,1,1) lds=45712")
    a.raw("; @launch kernel=ln2_kernel grid=(128,1,1) block=(256,1,1) lds=0")
    a.raw(f"; @launch kernel=gemm1_kernel grid=({16*G1_NT},1,1) block=(256,1,1) lds=131072")
    a.raw("; @launch kernel=gemm2_kernel grid=(256,1,1) block=(256,1,1) lds=110592")
    a.raw('.amdgcn_target "amdgcn-amd-amdhsa--gfx950"')
    a.raw(".text")
    gen_prep(a)
    gen_conv(a)
    gen_ln2(a)
    gen_gemm1(a)
    gen_gemm2(a)
    out = OUT
    open(out, "w").write(a.text())

if __name__ == "__main__":
    OUT = sys.argv[1] if len(sys.argv) > 1 else f"cdna_kernels/{NAME}.s"
    if len(sys.argv) > 2:
        STAMP = (sys.argv[2], int(sys.argv[3]), int(sys.argv[4]))
    main()
```

```python
import sys, re
src = open(sys.argv[1]).read()
B = [int(x) for x in sys.argv[3].split(",")]
KR = int(sys.argv[4])
n0 = int(re.search(r"kernel=pc_kernel grid=\((\d+)", src).group(1))
src = src.replace('.amdgcn_target', '; @launch kernel=rep_kernel grid=(1,1,1) block=(1024,1,1) lds=0\n.amdgcn_target', 1)
TLOFF = 48 << 20
L = [".text", ".globl rep_kernel", ".p2align 8", ".type rep_kernel,@function", "rep_kernel:"]
a = L.append
a("s_cmp_lg_u32 s2, 0"); a("s_cbranch_scc1 rep_end")
a("s_load_dwordx4 s[4:7], s[0:1], 120")
a("v_lshlrev_b32 v1, 4, v0")
a("s_waitcnt lgkmcnt(0)")
a(f"s_add_u32 s8, s6, {TLOFF}"); a("s_addc_u32 s9, s7, 0"); a("s_mov_b32 s10, 65536"); a("s_mov_b32 s11, 0x00020000")
a("s_mov_b32 s12, s4"); a("s_mov_b32 s13, s5"); a("s_mov_b32 s14, 256"); a("s_mov_b32 s15, 0x00020000")
a("s_mov_b32 s16, 32768"); a("s_mov_b32 s17, 49152")
a("buffer_load_dwordx4 v[4:7], v1, s[8:11], 0 offen")
a("buffer_load_dwordx4 v[8:11], v1, s[8:11], s16 offen")
a("buffer_load_dwordx4 v[12:15], v1, s[8:11], s17 offen")
a("v_mov_b32 v2, 0")
for b in B:
    a(f"v_mov_b32 v3, {b}")
    a("v_cmp_ge_u32 vcc, v0, v3"); a("s_nop 1"); a("v_addc_co_u32 v2, vcc, 0, v2, vcc")
a("v_lshlrev_b32 v3, 2, v2")
a("s_waitcnt vmcnt(0)")
a(f"v_mov_b32 v20, {n0}")
a("v_cmp_lt_u32 vcc, v0, v20"); a("s_and_saveexec_b64 s[20:21], vcc"); a("s_cbranch_execz rep_end")
a("v_not_b32 v16, v4"); a("v_not_b32 v17, v5")
a("buffer_atomic_umax v16, off, s[12:15], 0")
a("buffer_atomic_umax v4, off, s[12:15], 0 offset:4")
a("buffer_atomic_umax v5, v3, s[12:15], 0 offen offset:8")
a(f"v_cmp_eq_u32 vcc, {KR}, v2"); a("s_and_saveexec_b64 s[22:23], vcc"); a("s_cbranch_execz rep_a")
a("buffer_atomic_umax v17, off, s[12:15], 0 offset:28")
a("rep_a:")
a("s_mov_b64 exec, s[22:23]")
a("v_cmp_gt_u32 vcc, 0xe0, v0"); a("s_and_saveexec_b64 s[22:23], vcc"); a("s_cbranch_execz rep_end")
a("v_not_b32 v16, v8"); a("v_not_b32 v17, v9"); a("v_not_b32 v18, v15")
a("buffer_atomic_umax v16, off, s[12:15], 0 offset:32")
a("buffer_atomic_umax v8, off, s[12:15], 0 offset:36")
a("buffer_atomic_umax v12, off, s[12:15], 0 offset:40")
a("buffer_atomic_umax v13, off, s[12:15], 0 offset:44")
a("buffer_atomic_umax v18, off, s[12:15], 0 offset:48")
a("buffer_atomic_umax v15, off, s[12:15], 0 offset:52")
a("buffer_atomic_umax v17, off, s[12:15], 0 offset:56")
a("buffer_atomic_umax v9, off, s[12:15], 0 offset:60")
a("rep_end:"); a("s_endpgm")
L += """.section .rodata,"a"
.p2align 6
.amdhsa_kernel rep_kernel
  .amdhsa_next_free_vgpr 32
  .amdhsa_next_free_sgpr 32
  .amdhsa_accum_offset 32
  .amdhsa_group_segment_fixed_size 0
  .amdhsa_kernarg_size 136
  .amdhsa_user_sgpr_count 2
  .amdhsa_user_sgpr_kernarg_segment_ptr 1
  .amdhsa_system_sgpr_workgroup_id_x 1
.end_amdhsa_kernel
.text""".split("\n")
open(sys.argv[2], "w").write(src + "\n" + "\n".join(L) + "\n")
```

```python
import sys, re
src = open(sys.argv[1]).read()
B = [int(x) for x in sys.argv[3].split(",")]
KR = int(sys.argv[4]); I, J, M = int(sys.argv[5]), int(sys.argv[6]), int(sys.argv[7])
n0 = int(re.search(r"kernel=\w+_kernel grid=\((\d+)", src).group(1))
src = src.replace('.amdgcn_target', '; @launch kernel=rep_kernel grid=(1,1,1) block=(1024,1,1) lds=256\n.amdgcn_target', 1)
TLOFF = 48 << 20
L = [".text", ".globl rep_kernel", ".p2align 8", ".type rep_kernel,@function", "rep_kernel:"]
a = L.append
a("s_cmp_lg_u32 s2, 0"); a("s_cbranch_scc1 rep_end")
a("s_load_dwordx4 s[4:7], s[0:1], 120")
a("v_lshlrev_b32 v1, 4, v0")
a("v_and_b32 v21, 63, v0"); a("v_lshlrev_b32 v21, 2, v21"); a("v_mov_b32 v22, 0"); a("ds_write_b32 v21, v22")
a("s_waitcnt lgkmcnt(0)"); a("s_barrier")
a(f"s_add_u32 s8, s6, {TLOFF}"); a("s_addc_u32 s9, s7, 0"); a("s_mov_b32 s10, 65536"); a("s_mov_b32 s11, 0x00020000")
a("s_mov_b32 s12, s4"); a("s_mov_b32 s13, s5"); a("s_mov_b32 s14, 256"); a("s_mov_b32 s15, 0x00020000")
a("s_mov_b32 s16, 32768"); a("s_mov_b32 s17, 49152")
a("buffer_load_dwordx4 v[4:7], v1, s[8:11], 0 offen")
a("buffer_load_dwordx4 v[8:11], v1, s[8:11], s16 offen")
a("buffer_load_dwordx4 v[12:15], v1, s[8:11], s17 offen")
a("v_mov_b32 v2, 0")
for b in B:
    a(f"v_mov_b32 v3, {b}")
    a("v_cmp_ge_u32 vcc, v0, v3"); a("s_nop 1"); a("v_addc_co_u32 v2, vcc, 0, v2, vcc")
a("v_lshlrev_b32 v3, 2, v2")
a("s_waitcnt vmcnt(0)")
a(f"v_mov_b32 v20, {n0}")
a("v_cmp_lt_u32 vcc, v0, v20"); a("s_and_saveexec_b64 s[20:21], vcc"); a("s_cbranch_execz rep_b")
a("v_not_b32 v16, v4"); a("v_not_b32 v17, v5")
a("ds_max_u32 v22, v16"); a("ds_max_u32 v22, v4 offset:4"); a("ds_max_u32 v3, v5 offset:8"); a("ds_max_u32 v22, v5 offset:24")
a(f"v_cmp_eq_u32 vcc, {KR}, v2"); a("s_and_saveexec_b64 s[22:23], vcc"); a("s_cbranch_execz rep_a")
a("ds_max_u32 v22, v17 offset:28")
a("rep_a:")
a("s_mov_b64 exec, s[22:23]")
a("v_cmp_gt_u32 vcc, 0xe0, v0"); a("s_and_saveexec_b64 s[22:23], vcc"); a("s_cbranch_execz rep_b")
a("v_not_b32 v16, v8"); a("v_not_b32 v17, v9"); a("v_not_b32 v18, v15")
for r, o in ((16, 32), (8, 36), (12, 40), (13, 44), (18, 48), (15, 52), (17, 56), (9, 60)):
    a(f"ds_max_u32 v22, v{r} offset:{o}")
a("rep_b:")
a("s_mov_b64 exec, -1")
a("s_waitcnt lgkmcnt(0)"); a("s_barrier")
a("v_cmp_gt_u32 vcc, 16, v0"); a("s_and_saveexec_b64 s[22:23], vcc"); a("s_cbranch_execz rep_end")
a("ds_read_b32 v4, v21"); a("s_memrealtime s[24:25]"); a("s_waitcnt lgkmcnt(0)")
a("buffer_store_dword v4, v21, s[12:15], 0 offen")
a(f"v_readlane_b32 s26, v4, {I}"); a(f"v_readlane_b32 s27, v4, {J}")
NEG = (0, 7, 8, 12, 14)
if I in NEG: a("s_not_b32 s26, s26")
if J in NEG: a("s_not_b32 s27, s27")
a("s_sub_u32 s26, s26, s27"); a("s_min_u32 s26, s26, 5000"); a(f"s_mul_i32 s26, s26, {M}")
a("rep_spin:")
a("s_memrealtime s[28:29]"); a("s_waitcnt lgkmcnt(0)"); a("s_sub_u32 s28, s28, s24"); a("s_cmp_lt_u32 s28, s26"); a("s_cbranch_scc1 rep_spin")
a("rep_end:"); a("s_endpgm")
L += """.section .rodata,"a"
.p2align 6
.amdhsa_kernel rep_kernel
  .amdhsa_next_free_vgpr 32
  .amdhsa_next_free_sgpr 32
  .amdhsa_accum_offset 32
  .amdhsa_group_segment_fixed_size 0
  .amdhsa_kernarg_size 136
  .amdhsa_user_sgpr_count 2
  .amdhsa_user_sgpr_kernarg_segment_ptr 1
  .amdhsa_system_sgpr_workgroup_id_x 1
.end_amdhsa_kernel
.text""".split("\n")
open(sys.argv[2], "w").write(src + "\n" + "\n".join(L) + "\n")
```
